```python
import torch

def _softmax(x, axis=-1):
    return torch.softmax(x, dim=axis)
def _gelu(x):
    return torch.nn.functional.gelu(x, approximate="tanh")
def _silu(x):
    return torch.nn.functional.silu(x)
def _sigmoid(x):
    return torch.sigmoid(x)
def _layernorm(x, axis=-1, eps=1e-5):
    m = x.mean(dim=axis, keepdim=True)
    v = x.var(dim=axis, keepdim=True, unbiased=False)
    return (x - m) / torch.sqrt(v + eps)
def _scatter_add(tgt, idx, src, axis=0):
    return tgt.clone().index_add_(axis, idx, src)
def _segment_sum(src, seg, n):
    out = torch.zeros((n,) + src.shape[1:], dtype=src.dtype)
    return out.index_add_(0, seg, src)
def _pad(x, pw):
    flat = tuple(v for pair in reversed(pw) for v in pair)
    return torch.nn.functional.pad(x, flat)

kernel_name = 'standalone__mha_softmax__near_ridge'

def setup_inputs():

    _w = (lambda a: (lambda t: t.to(torch.bfloat16) if t.is_floating_point() else t)(torch.as_tensor(a)))
    B, H, Sq, Sk, D = 32, 32, 256, 256, 192
    return {
        "q": _w((lambda *s: torch.randn(*s, dtype=torch.bfloat16) * 0.8)(B, H, Sq, D)),
        "k": _w((lambda *s: torch.randn(*s, dtype=torch.bfloat16) * 0.8)(B, H, Sk, D)),
        "v": _w((lambda *s: torch.randn(*s, dtype=torch.bfloat16) * 0.05)(B, H, Sk, D)),
    }

def reference(q, k, v):
    scale = q.shape[-1] ** -0.5
    scores = torch.einsum("bhqd,bhkd->bhqk", q, k) * scale
    p = _softmax(scores, axis=-1)
    return torch.einsum("bhqk,bhkd->bhqd", p, v)
```

```python
import struct, math, sys, argparse

NAME = "standalone__mha_softmax__near_ridge"
HEAD_BYTES = 256 * 384
TENSOR_BYTES = 1024 * HEAD_BYTES
TILE = 64 * 384

def f32hex(x):
    return "0x%08x" % struct.unpack("<I", struct.pack("<f", x))[0]

HEADER = """; Kernarg layout for this problem (48 bytes, ptrs only, base s[0:1]):
"""

S0 = 0
QF = 128
FB = 176
VD = 208
VA = 211
VB = 215
VC = 219
VST = 223
VT = 224
NV = 240

SQ, SK, SV, SO, SN = 12, 16, 20, 24, 28
sW, sW3, sCUR, sNXT, sPROD, sCONS, sREM, sC, sNC, sT, sT2, sWH, sWO, sPLIM = range(32, 46)

def otile(t):
    return 64 + 16 * t if t < 4 else QF + 16 * (t - 4)

class G:
    def __init__(self, NS=6, ld="", st="", mapping="strided", PK=4, PV=4, twobar=False):
        self.NS, self.ld, self.st, self.mapping = NS, ld, st, mapping
        self.PK, self.PVd, self.twobar = PK, PV, twobar
        self.o = []
    def e(self, s):
        self.o.append("    " + s)
    def lab(self, s):
        self.o.append(s + ":")
    def c(self, s):
        self.o.append("    ; " + s)

    def dma(self, pt, headreg):
        srd = [SQ, SK, SV][pt // 4]
        off = (pt % 4) * TILE
        e = self.e
        e(f"s_mov_b32 m0, s{sPROD}")
        if off:
            e(f"s_add_u32 s{sT}, s{headreg}, {off}")
            so = sT
        else:
            e("s_nop 0")
            so = headreg
        for i in range(3):
            o = f" offset:{1024*i}" if i else ""
            e(f"buffer_load_dwordx4 v{VD+i}, s[{srd}:{srd+3}], s{so} offen{o}{self.ld} lds")
        e(f"s_add_u32 s{sPROD}, s{sPROD}, {TILE}")
        e(f"s_cmp_eq_u32 s{sPROD}, s{sPLIM}")
        e(f"s_cselect_b32 s{sPROD}, s{sW3}, s{sPROD}")

    def adv_cons(self):
        e = self.e
        e(f"s_add_u32 s{sCONS}, s{sCONS}, {TILE}")
        e(f"s_cmp_eq_u32 s{sCONS}, {self.NS*TILE}")
        e(f"s_cselect_b32 s{sCONS}, 0, s{sCONS}")

    def prologue(self):
        e = self.e
        NS = self.NS
        e("s_cmp_ge_u32 s2, 256")
        e("s_cbranch_scc1 L_end")
        e("s_load_dwordx8 s[4:11], s[0:1], 0")
        e("v_and_b32 v1, 63, v0                 ; lane")
        e("v_lshrrev_b32 v2, 6, v0              ; wave")
        e("v_lshrrev_b32 v3, 3, v1              ; lane/8")
        e(f"v_readfirstlane_b32 s{sW}, v2")
        e("v_and_b32 v4, 7, v1                  ; lane%8")
        e("v_and_b32 v5, 1, v2")
        e("v_lshlrev_b32 v5, 1, v5              ; (w&1)<<1")
        e("v_mul_u32_u24 v6, 3072, v2           ; w*3072")
        e("v_lshl_add_u32 v6, v3, 7, v6         ; + (lane/8)*128")
        for i in range(3):
            e(f"v_add_u32 v7, {8*i}, v3")
            e("v_mul_u32_u24 v7, 11, v7")
            e("v_lshrrev_b32 v7, 5, v7")
            e("v_bfe_u32 v8, v7, 1, 1")
            e("v_lshlrev_b32 v8, 2, v8")
            e("v_bfe_u32 v9, v7, 2, 1")
            e("v_or3_b32 v8, v8, v9, v5             ; f(row)")
            e("v_xor_b32 v8, v8, v4")
            e(f"v_lshl_add_u32 v{VD+i}, v8, 4, v6")
        e("v_and_b32 v7, 31, v1                 ; m")
        e("v_lshrrev_b32 v8, 5, v1              ; h")
        e("v_bfe_u32 v9, v7, 1, 1")
        e("v_lshlrev_b32 v9, 2, v9")
        e("v_bfe_u32 v10, v7, 2, 2")
        e("v_or_b32 v9, v9, v10                 ; f(m)")
        e("v_xor_b32 v9, v9, v8                 ; f(m)^h")
        e("v_mul_u32_u24 v10, 384, v7           ; m*384")
        for u in range(4):
            e(f"v_xor_b32 v11, {2*u}, v9")
            e(f"v_lshl_add_u32 v{VA+u}, v11, 4, v10")
        e("v_mul_u32_u24 v11, 12288, v2")
        e("v_add_u32 v11, v11, v10")
        e(f"v_lshl_add_u32 v{VST}, v8, 4, v11")
        e("v_bfe_u32 v9, v1, 2, 2               ; r")
        e("v_lshl_add_u32 v10, v8, 2, v9        ; 4h+r")
        e("v_mul_u32_u24 v10, 384, v10")
        e("v_bfe_u32 v11, v1, 1, 1              ; cc>>1")
        e("v_lshl_add_u32 v10, v11, 3, v10      ; base")
        e("v_bfe_u32 v11, v1, 3, 1              ; r>>1")
        e("v_lshlrev_b32 v11, 2, v11")
        e("v_bfe_u32 v12, v1, 4, 1              ; up")
        e("v_lshlrev_b32 v12, 1, v12")
        e("v_and_b32 v13, 1, v1")
        e("v_xor_b32 v13, v13, v8               ; (cc&1)^h")
        e("v_or3_b32 v11, v11, v12, v13         ; x")
        for tau in range(2):
            for rho in range(2):
                e(f"v_xor_b32 v12, {(tau<<2)|(rho<<1)}, v11")
                e(f"v_lshl_add_u32 v12, v12, 4, v10")
                e(f"v_add_u32 v{VB+2*tau+rho}, {rho*3072}, v12")
        e(f"s_mul_i32 s{sW3}, s{sW}, 3072")
        e(f"s_lshr_b32 s{sWH}, s{sW}, 1")
        e(f"s_and_b32 s{sWO}, s{sW}, 1")
        e(f"s_mul_i32 s{sWO}, s{sWO}, 12288")
        e(f"s_mov_b32 s{sPROD}, s{sW3}")
        e(f"s_add_u32 s{sPLIM}, s{sW3}, {NS*TILE}")
        e(f"s_mov_b32 s{sCONS}, 0")
        e(f"s_mov_b32 s{sREM}, 4")
        c = 192 ** -0.5 * math.log2(math.e)
        e(f"s_mov_b32 s{sC}, {f32hex(c)}")
        e(f"s_mov_b32 s{sNC}, {f32hex(-c)}")
        if self.mapping == "strided":
            e(f"s_mul_i32 s{sCUR}, s2, {HEAD_BYTES}")
            self.hstep = 256 * HEAD_BYTES
        else:
            e(f"s_mul_i32 s{sCUR}, s2, {4*HEAD_BYTES}")
            self.hstep = HEAD_BYTES
        e(f"s_add_u32 s{sNXT}, s{sCUR}, {self.hstep}")
        e("s_waitcnt lgkmcnt(0)")
        for srd, p, n in ((SQ, 4, TENSOR_BYTES), (SK, 6, TENSOR_BYTES), (SV, 8, TENSOR_BYTES), (SO, 10, TENSOR_BYTES), (SN, 4, 0)):
            e(f"s_mov_b32 s{srd}, s{p}")
            e(f"s_and_b32 s{srd+1}, s{p+1}, 0xffff")
            e(f"s_mov_b32 s{srd+2}, {n}")
            e(f"s_mov_b32 s{srd+3}, 0x20000")
        npre = NS if self.twobar else NS - 1
        for pt in range(npre):
            self.dma(pt, sCUR)
        self.c("12 out-of-range loads stand in for the previous head's 12 stores so the counted waits match")
        for i in range(12):
            e(f"buffer_load_dword v{VT}, v{VST}, s[{SN}:{SN+3}], 0 offen")

    def pipeline(self, items, depth, rpf):
        e = self.e
        n = len(items)
        for j in range(min(depth, n)):
            for r in items[j][0](FB + 4 * (j % depth)):
                e(r)
        for j in range(n):
            issued = min(j + depth, n)
            e(f"s_waitcnt lgkmcnt({(issued - j - 1) * rpf})")
            e(items[j][1](FB + 4 * (j % depth)))
            if j + depth < n:
                for r in items[j + depth][0](FB + 4 * (j % depth)):
                    e(r)

    def qstep(self, i):
        e = self.e
        e(f"s_cmp_eq_u32 s{sWH}, {i}")
        e(f"s_cbranch_scc0 L_q{i}")
        e(f"s_add_u32 s{sT2}, s{sCONS}, s{sWO}")
        for u in range(4):
            e(f"v_add_u32 v{VC+u}, s{sT2}, v{VA+u}")
        for s in range(12):
            e(f"ds_read_b128 v[{QF+4*s}:{QF+4*s+3}], v{VC+s%4} offset:{128*(s//4)}")
        e("s_waitcnt lgkmcnt(0)")
        self.lab(f"L_q{i}")

    def kstep(self, kt):
        e = self.e
        for u in range(4):
            e(f"v_add_u32 v{VC+u}, s{sCONS}, v{VA+u}")
        items = []
        for s in range(12):
            for st in range(2):
                D = S0 + 16 * (2 * kt + st)
                def rd(b, s=s, st=st):
                    return [f"ds_read_b128 v[{b}:{b+3}], v{VC+s%4} offset:{st*12288+128*(s//4)}"]
                def mf(b, s=s, D=D):
                    C = "0" if s == 0 else f"v[{D}:{D+15}]"
                    return f"v_mfma_f32_32x32x16_bf16 v[{D}:{D+15}], v[{b}:{b+3}], v[{QF+4*s}:{QF+4*s+3}], {C}"
                items.append((rd, mf))
        self.pipeline(items, self.PK, 1)

    def vstep(self, vt):
        e = self.e
        for u in range(4):
            e(f"v_add_u32 v{VC+u}, s{sCONS}, v{VB+u}")
        items = []
        for ks in range(4):
            for t in range(6):
                D = otile(t)
                P = 8 * (2 * vt + ks // 2) + 4 * (ks % 2)
                def rd(b, ks=ks, t=t):
                    off = ks * 6144 + (t // 2) * 128
                    return [f"ds_read_b64_tr_b16 v[{b}:{b+1}], v{VC+2*(t%2)} offset:{off}",
                            f"ds_read_b64_tr_b16 v[{b+2}:{b+3}], v{VC+2*(t%2)+1} offset:{off}"]
                def mf(b, ks=ks, D=D, P=P, vt=vt):
                    C = "0" if (vt == 0 and ks == 0) else f"v[{D}:{D+15}]"
                    return f"v_mfma_f32_32x32x16_bf16 v[{D}:{D+15}], v[{b}:{b+3}], v[{P}:{P+3}], {C}"
                items.append((rd, mf))
        self.pipeline(items, self.PVd, 2)

    def softmax(self):
        e = self.e
        M = VT
        NEG = VT + 4
        SUM = VT + 5
        for ch in range(4):
            b = 32 * ch
            e(f"v_max3_f32 v{M+ch}, v{b}, v{b+1}, v{b+2}")
        order = []
        for k in range(14):
            for ch in range(4):
                order.append((ch, 32 * ch + 3 + 2 * k))
        return M, NEG, SUM, order

    def softmax_emit(self):
        e = self.e
        M = VT
        NEG = VT + 4
        SUM = VT + 5
        vals = list(range(128))
        chains = [[], [], [], []]
        for idx, v in enumerate(vals):
            chains[(idx // 2) % 4].append(v)
        for ch in range(4):
            e(f"v_max_f32 v{M+ch}, v{chains[ch][0]}, v{chains[ch][1]}")
        for k in range(1, 16):
            for ch in range(4):
                e(f"v_max3_f32 v{M+ch}, v{M+ch}, v{chains[ch][2*k]}, v{chains[ch][2*k+1]}")
        e(f"v_max3_f32 v{M}, v{M}, v{M+1}, v{M+2}")
        e(f"v_max_f32 v{M}, v{M}, v{M+3}")
        e(f"v_mov_b32 v{M+1}, v{M}")
        e("s_nop 1")
        e(f"v_permlane32_swap_b32 v{M}, v{M+1}")
        e(f"v_max_f32 v{M}, v{M}, v{M+1}")
        e(f"v_mul_f32 v{NEG}, s{sNC}, v{M}")
        def fma(i):
            e(f"v_fma_f32 v{2*i}, v{2*i}, s{sC}, v{NEG}")
            e(f"v_fma_f32 v{2*i+1}, v{2*i+1}, s{sC}, v{NEG}")
        def ex(i):
            e(f"v_exp_f32 v{2*i}, v{2*i}")
            e(f"v_exp_f32 v{2*i+1}, v{2*i+1}")
        def fin(i):
            if i == 0:
                e(f"v_mov_b32 v{SUM}, v0")
                e(f"v_mov_b32 v{SUM+1}, v1")
            else:
                e(f"v_add_f32 v{SUM}, v{SUM}, v{2*i}")
                e(f"v_add_f32 v{SUM+1}, v{SUM+1}, v{2*i+1}")
            e(f"v_cvt_pk_bf16_f32 v{i}, v{2*i}, v{2*i+1}")
        fma(0); fma(1); ex(0)
        for i in range(64):
            if i + 2 < 64: fma(i + 2)
            if i + 1 < 64: ex(i + 1)
            else: e("s_nop 0")
            fin(i)
        e(f"v_add_f32 v{SUM}, v{SUM}, v{SUM+1}")
        e(f"v_mov_b32 v{SUM+1}, v{SUM}")
        e("s_nop 1")
        e(f"v_permlane32_swap_b32 v{SUM}, v{SUM+1}")
        e(f"v_add_f32 v{SUM}, v{SUM}, v{SUM+1}")
        e(f"v_rcp_f32 v{VT+8}, v{SUM}")

    def epilogue(self):
        e = self.e
        INV = VT + 8
        e("s_nop 7")
        for t in range(6):
            b = otile(t)
            for half in range(2):
                r0 = b + 8 * half
                for k in range(8):
                    e(f"v_mul_f32 v{r0+k}, v{r0+k}, v{INV}")
                d = r0
                for k in range(4):
                    e(f"v_cvt_pk_bf16_f32 v{d+k}, v{r0+2*k}, v{r0+2*k+1}")
                e(f"buffer_store_dwordx4 v[{d}:{d+3}], v{VST}, s[{SO}:{SO+3}], s{sCUR} offen offset:{64*t+32*half}{self.st}")

    def build(self):
        NS = self.NS
        e = self.e
        lds = NS * TILE
        self.o.append(HEADER + f"; @launch grid=(256,1,1) block=(512,1,1) lds={lds}")
        self.o.append('.amdgcn_target "amdgcn-amd-amdhsa--gfx950"')
        self.o.append(".text")
        self.o.append(f".globl {NAME}_kernel")
        self.o.append(".p2align 8")
        self.o.append(f".type {NAME}_kernel,@function")
        self.lab(f"{NAME}_kernel")
        self.prologue()
        self.o.append(".p2align 6")
        self.lab("L_head")
        ahead = NS if self.twobar else NS - 1
        def prefetch(i):
            pt = i + ahead
            if pt == 12:
                self.c("first prefetch of the next head: past the last head make every load out of range")
                e(f"s_cmp_eq_u32 s{sREM}, 1")
                for srd in (SQ, SK, SV):
                    e(f"s_cselect_b32 s{srd+2}, 0, s{srd+2}")
            if pt < 12:
                self.dma(pt, sCUR)
            else:
                self.dma(pt - 12, sNXT)
        for i in range(12):
            self.c(f"---- step {i}")
            n = 3 * (ahead - 1) + (12 if i < ahead else 0)
            if self.twobar and i == 0:
                pass
            e(f"s_waitcnt vmcnt({n})")
            e("s_barrier")
            if not self.twobar:
                prefetch(i)
            if i < 4:
                self.qstep(i)
            elif i < 8:
                self.kstep(i - 4)
            else:
                self.vstep(i - 8)
            self.adv_cons()
            if self.twobar:
                e("s_barrier")
                prefetch(i)
            if i == 7:
                self.softmax_emit()
        self.epilogue()
        e(f"s_mov_b32 s{sCUR}, s{sNXT}")
        e(f"s_add_u32 s{sNXT}, s{sNXT}, {self.hstep}")
        e(f"s_sub_u32 s{sREM}, s{sREM}, 1")
        e(f"s_cmp_lg_u32 s{sREM}, 0")
        e("s_cbranch_scc1 L_head")
        e("s_waitcnt vmcnt(0)")
        self.lab("L_end")
        e("s_endpgm")
        self.o.append(f""".section .rodata,"a"
.p2align 6
.amdhsa_kernel {NAME}_kernel
  .amdhsa_next_free_vgpr {NV}
  .amdhsa_next_free_sgpr 64
  .amdhsa_accum_offset {NV}
  .amdhsa_group_segment_fixed_size 0
  .amdhsa_kernarg_size 48
  .amdhsa_user_sgpr_count 2
  .amdhsa_user_sgpr_kernarg_segment_ptr 1
  .amdhsa_system_sgpr_workgroup_id_x 1
.end_amdhsa_kernel
""")
        return "\n".join(self.o)

if __name__ == "__main__":
    ap = argparse.ArgumentParser()
    ap.add_argument("-o", default=f"cdna_kernels/{NAME}.s")
    ap.add_argument("--ns", type=int, default=6)
    ap.add_argument("--ld", default="")
    ap.add_argument("--st", default="")
    ap.add_argument("--map", default="strided")
    ap.add_argument("--pk", type=int, default=4)
    ap.add_argument("--pv", type=int, default=4)
    ap.add_argument("--twobar", action="store_true")
    a = ap.parse_args()
    fl = lambda s: "".join(" " + x for x in s.split(",") if x)
    g = G(NS=a.ns, ld=fl(a.ld), st=fl(a.st), mapping=a.map, PK=a.pk, PV=a.pv, twobar=a.twobar)
    open(a.o, "w").write(g.build())
```

```python
import struct, math, sys, argparse

NAME = "standalone__mha_softmax__near_ridge"
HEAD_BYTES = 256 * 384
TENSOR_BYTES = 1024 * HEAD_BYTES
TILE = 64 * 384
NS = 6

def f32hex(x):
    return "0x%08x" % struct.unpack("<I", struct.pack("<f", x))[0]

HEADER = """; Kernarg layout for this problem (48 bytes, ptrs only, base s[0:1]):
"""

S0 = 0
QR = 128
XR = 180
FB = 212
TR0, TR1 = 236, 237
VD = 244
VA0 = 247
VB0 = 248
VC = 249
VQO = 253
INV = 254
NV = 256

SQ, SK, SV, SO = 12, 16, 20, 24
sW, sW3, sCUR, sNXT, sPROD, sCONS, sREM, sC, sNC, sT, sNXT2, sPRV, sPRV2, sPLIM = range(32, 46)

def otile(t):
    return 64 + 16 * t if t < 4 else XR + 16 * (t - 4)

def qslot(n):
    return QR + 4 * n
QLD = [[1 + 4 * cc + j for j in range(4)] for cc in range(3)]
QTMP = [0, 3, 7]
QFIN = [[QTMP[cc], QLD[cc][1], QLD[cc][0], QLD[cc][3]] for cc in range(3)]
def qfrag(s):
    return qslot(QFIN[s // 4][s % 4])

class G:
    def __init__(self, a):
        self.a = a
        fl = lambda s: "".join(" " + x for x in s.split(",") if x)
        self.ld, self.st, self.ldq = fl(a.ld), fl(a.st), fl(a.ldq if a.ldq is not None else a.ld)
        self.o = []
        self.ops = []
        self.waits = []
        self.pro_ops = []
        self.inpro = False
    def e(self, s):
        self.o.append("    " + s)
    def lab(self, s):
        self.o.append(s + ":")
    def c(self, s):
        self.o.append("    ; " + s)
    def vm(self, s, tag):
        self.e(s)
        (self.pro_ops if self.inpro else self.ops).append(tag)
    def wait_for(self, tag, nxt):
        self.o.append(None)
        self.waits.append((len(self.o) - 1, tag, len(self.ops), self.inpro, len(self.pro_ops)))

    def trace(self, vreg, inc=False):
        if not self.a.trace:
            return
        e = self.e
        e("s_memtime s[64:65]")
        e("s_mov_b32 m0, s66")
        e("s_waitcnt lgkmcnt(0)")
        e(f"v_writelane_b32 v{vreg}, s64, m0")
        if inc:
            e("s_add_u32 s66, s66, 1")

    def dma_instrs(self, t, headreg):
        srd = SK if t < 4 else SV
        off = (t % 4) * TILE
        pre = [f"s_mov_b32 m0, s{sPROD}"]
        if off:
            pre.append(f"s_add_u32 s{sT}, s{headreg}, {off}")
            so = sT
        else:
            pre.append("s_nop 0")
            so = headreg
        ld = []
        for i in range(3):
            o = f" offset:{1024*i}" if i else ""
            ld.append(f"buffer_load_dwordx4 v{VD+i}, s[{srd}:{srd+3}], s{so} offen{o}{self.ld} lds")
        post = [f"s_add_u32 s{sPROD}, s{sPROD}, {TILE}",
                f"s_cmp_eq_u32 s{sPROD}, s{sPLIM}",
                f"s_cselect_b32 s{sPROD}, s{sW3}, s{sPROD}"]
        return pre, ld, post
    def dma(self, t, headreg, tag):
        pre, ld, post = self.dma_instrs(t, headreg)
        for s in pre: self.e(s)
        for s in ld: self.vm(s, tag)
        for s in post: self.e(s)
    def qload(self, k, h0, h1):
        cc, j = k // 4, k % 4
        r = qslot(QLD[cc][j])
        so = h1 if j >= 2 else h0
        off = (j & 1) * 3072 + 128 * cc
        o = f" offset:{off}" if off else ""
        return (f"buffer_load_dwordx4 v[{r}:{r+3}], v{VQO}, s[{SQ}:{SQ+3}], s{so} offen{o}{self.ldq}", "Q")
    def oregs(self, cc):
        b = otile(2 * cc)
        return [b + 16, b + 4, b + 0, b + 12]
    def ostore(self, cc, j):
        r = self.oregs(cc)[j]
        so = sPRV2 if j >= 2 else sPRV
        off = (j & 1) * 3072 + 128 * cc
        o = f" offset:{off}" if off else ""
        return (f"buffer_store_dwordx4 v[{r}:{r+3}], v{VQO}, s[{SO}:{SO+3}], s{so} offen{o}{self.st}", "O")

    def transp(self, L, T):
        out = []
        for (a, b, d) in ((L[0], L[1], T), (L[2], L[3], L[0])):
            for k in range(4):
                out.append(f"v_cndmask_b32_dpp v{d+k}, v{b+k}, v{a+k}, vcc row_ror:8 row_mask:0xf bank_mask:0xf")
            for k in range(4):
                out.append(f"v_mov_b32_dpp v{b+k}, v{a+k} row_ror:8 row_mask:0xf bank_mask:0x3")
        F = [T, L[1], L[0], L[3]]
        for (a, b) in ((F[0], F[2]), (F[1], F[3])):
            for k in range(4):
                out.append(f"v_permlane16_swap_b32 v{a+k}, v{b+k}")
        return out

    def adv_cons(self):
        e = self.e
        e(f"s_add_u32 s{sCONS}, s{sCONS}, {TILE}")
        e(f"s_cmp_eq_u32 s{sCONS}, {NS*TILE}")
        e(f"s_cselect_b32 s{sCONS}, 0, s{sCONS}")

    def prologue(self):
        e, a = self.e, self.a
        e("s_cmp_ge_u32 s2, 256")
        e("s_cbranch_scc1 L_end")
        if a.stamp:
            e("s_memrealtime s[50:51]")
            e("s_memtime s[52:53]")
            e("s_load_dwordx2 s[48:49], s[0:1], 40")
            e("s_mov_b32 s66, 0")
        e("s_load_dwordx8 s[4:11], s[0:1], 0")
        e("v_and_b32 v1, 63, v0                 ; lane")
        e("v_lshrrev_b32 v2, 6, v0              ; wave")
        e("v_lshrrev_b32 v3, 3, v1              ; lane/8")
        e(f"v_readfirstlane_b32 s{sW}, v2")
        e("v_and_b32 v4, 7, v1                  ; lane%8")
        e("v_and_b32 v5, 1, v2")
        e("v_lshlrev_b32 v5, 1, v5              ; (w&1)<<1")
        e("v_mul_u32_u24 v6, 3072, v2           ; w*3072")
        e("v_lshl_add_u32 v6, v3, 7, v6         ; + (lane/8)*128")
        for i in range(3):
            e(f"v_add_u32 v7, {8*i}, v3")
            e("v_mul_u32_u24 v7, 11, v7")
            e("v_lshrrev_b32 v7, 5, v7")
            e("v_bfe_u32 v8, v7, 1, 1")
            e("v_lshlrev_b32 v8, 2, v8")
            e("v_bfe_u32 v9, v7, 2, 1")
            e("v_or3_b32 v8, v8, v9, v5             ; f(row)")
            e("v_xor_b32 v8, v8, v4")
            e(f"v_lshl_add_u32 v{VD+i}, v8, 4, v6")
        e("v_lshrrev_b32 v8, 5, v1              ; h")
        e("v_lshl_add_u32 v11, v2, 5, v4")
        e("v_mul_u32_u24 v11, 384, v11")
        e("v_and_b32 v12, 3, v3")
        e("v_lshl_add_u32 v11, v12, 5, v11")
        e(f"v_lshl_add_u32 v{VQO}, v8, 4, v11")
        e(f"s_mul_i32 s{sW3}, s{sW}, 3072")
        e(f"s_mov_b32 s{sPROD}, s{sW3}")
        e(f"s_add_u32 s{sPLIM}, s{sW3}, {NS*TILE}")
        e(f"s_mul_i32 s{sCUR}, s2, {HEAD_BYTES}")
        self.hstep = 256 * HEAD_BYTES
        e(f"s_add_u32 s{sNXT2}, s{sCUR}, 6144")
        e("s_waitcnt lgkmcnt(0)")
        for srd, p, n in ((SQ, 4, TENSOR_BYTES), (SK, 6, TENSOR_BYTES), (SV, 8, TENSOR_BYTES), (SO, 10, 0)):
            if a.noload and srd != SO:
                n = 0
            e(f"s_mov_b32 s{srd}, s{p}")
            e(f"s_and_b32 s{srd+1}, s{p+1}, 0xffff")
            e(f"s_mov_b32 s{srd+2}, {n}")
            e(f"s_mov_b32 s{srd+3}, 0x20000")
        self.inpro = True
        for step in self.pro_order:
            if step == "Q":
                for k in range(12):
                    self.vm(*self.qload(k, sCUR, sNXT2))
            else:
                self.dma(step, sCUR, f"T{step}")
        e("v_and_b32 v7, 31, v1                 ; m")
        e("v_bfe_u32 v9, v7, 1, 1")
        e("v_lshlrev_b32 v9, 2, v9")
        e("v_bfe_u32 v10, v7, 2, 2")
        e("v_or_b32 v9, v9, v10                 ; f(m)")
        e("v_xor_b32 v9, v9, v8                 ; f(m)^h")
        e("v_mul_u32_u24 v10, 384, v7           ; m*384")
        e(f"v_lshl_add_u32 v{VA0}, v9, 4, v10")
        e("v_bfe_u32 v9, v1, 2, 2               ; r")
        e("v_lshl_add_u32 v10, v8, 2, v9        ; 4h+r")
        e("v_mul_u32_u24 v10, 384, v10")
        e("v_bfe_u32 v11, v1, 1, 1              ; cc>>1")
        e("v_lshl_add_u32 v10, v11, 3, v10      ; base")
        e("v_bfe_u32 v11, v1, 3, 1              ; r>>1")
        e("v_lshlrev_b32 v11, 2, v11")
        e("v_bfe_u32 v12, v1, 4, 1              ; up")
        e("v_lshlrev_b32 v12, 1, v12")
        e("v_and_b32 v13, 1, v1")
        e("v_xor_b32 v13, v13, v8               ; (cc&1)^h")
        e("v_or3_b32 v11, v11, v12, v13         ; x")
        e(f"v_lshl_add_u32 v{VB0}, v11, 4, v10")
        e(f"s_mov_b32 s{sCONS}, 0")
        e(f"s_mov_b32 s{sREM}, 4")
        c = 192 ** -0.5 * math.log2(math.e)
        e(f"s_mov_b32 s{sC}, {f32hex(c)}")
        e(f"s_mov_b32 s{sNC}, {f32hex(-c)}")
        e(f"s_add_u32 s{sNXT}, s{sCUR}, {self.hstep}")
        e(f"s_add_u32 s{sNXT2}, s{sNXT}, 6144")
        e(f"s_mov_b32 s{sPRV}, s{sCUR}")
        e(f"s_mov_b32 s{sPRV2}, s{sCUR}")
        e("s_mov_b32 vcc_lo, 0x00ff00ff")
        e("s_mov_b32 vcc_hi, 0x00ff00ff")
        self.wait_for("T0", False)
        e("s_barrier")
        self.inpro = False

    def pipeline(self, items, depth, rpf, sides=None):
        e = self.e
        n = len(items)
        sides = sides or {}
        for j in range(min(depth, n)):
            for r in items[j][0](FB + 4 * (j % depth)):
                e(r)
        for j in range(n):
            issued = min(j + depth, n)
            e(f"s_waitcnt lgkmcnt({(issued - j - 1) * rpf})")
            e(items[j][1](FB + 4 * (j % depth)))
            if j + depth < n:
                for r in items[j + depth][0](FB + 4 * (j % depth)):
                    e(r)
            for s, tag in sides.get(j, []):
                if tag: self.vm(s, tag)
                else: e(s)

    def kstep(self, kt, sides=None):
        e = self.e
        e(f"v_add_u32 v{VC}, s{sCONS}, v{VA0}")
        for u in range(1, 4):
            e(f"v_xor_b32 v{VC+u}, {u<<5}, v{VC}")
        items = []
        for s in range(12):
            for st in range(2):
                D = S0 + 16 * (2 * kt + st)
                def rd(b, s=s, st=st):
                    return [f"ds_read_b128 v[{b}:{b+3}], v{VC+s%4} offset:{st*12288+128*(s//4)}"]
                def mf(b, s=s, D=D):
                    C = "0" if s == 0 else f"v[{D}:{D+15}]"
                    q = qfrag(s)
                    return f"v_mfma_f32_32x32x16_bf16 v[{D}:{D+15}], v[{b}:{b+3}], v[{q}:{q+3}], {C}"
                items.append((rd, mf))
        if self.a.nocompute:
            for j in sorted(sides or {}):
                for s, tag in sides[j]:
                    if tag: self.vm(s, tag)
                    else: e(s)
            return
        self.pipeline(items, self.a.pk, 1, sides)

    def vstep(self, vt, sides=None):
        e = self.e
        e(f"v_add_u32 v{VC}, s{sCONS}, v{VB0}")
        for u in range(1, 4):
            e(f"v_xor_b32 v{VC+u}, {u<<5}, v{VC}")
        items = []
        for ks in range(4):
            for t in range(6):
                D = otile(t)
                P = 8 * (2 * vt + ks // 2) + 4 * (ks % 2)
                def rd(b, ks=ks, t=t):
                    off = ks * 6144 + (t // 2) * 128
                    return [f"ds_read_b64_tr_b16 v[{b}:{b+1}], v{VC+2*(t%2)} offset:{off}",
                            f"ds_read_b64_tr_b16 v[{b+2}:{b+3}], v{VC+2*(t%2)+1} offset:{off+3072}"]
                def mf(b, ks=ks, D=D, P=P, vt=vt):
                    C = "0" if (vt == 0 and ks == 0) else f"v[{D}:{D+15}]"
                    return f"v_mfma_f32_32x32x16_bf16 v[{D}:{D+15}], v[{b}:{b+3}], v[{P}:{P+3}], {C}"
                items.append((rd, mf))
        if self.a.nocompute:
            for j in sorted(sides or {}):
                for s, tag in sides[j]:
                    if tag: self.vm(s, tag)
                    else: e(s)
            return
        self.pipeline(items, self.a.pv, 2, sides)

    def softmax_list(self):
        o = []
        e = o.append
        M = FB
        NEG = FB + 4
        SUM = FB + 5
        chains = [[], [], [], []]
        for idx in range(128):
            chains[(idx // 2) % 4].append(idx)
        for ch in range(4):
            e(f"v_max_f32 v{M+ch}, v{chains[ch][0]}, v{chains[ch][1]}")
        for k in range(1, 16):
            for ch in range(4):
                e(f"v_max3_f32 v{M+ch}, v{M+ch}, v{chains[ch][2*k]}, v{chains[ch][2*k+1]}")
        e(f"v_max3_f32 v{M}, v{M}, v{M+1}, v{M+2}")
        e(f"v_max_f32 v{M}, v{M}, v{M+3}")
        e(f"v_mov_b32 v{M+1}, v{M}")
        e("s_nop 1")
        e(f"v_permlane32_swap_b32 v{M}, v{M+1}")
        e(f"v_max_f32 v{M}, v{M}, v{M+1}")
        e(f"v_mul_f32 v{NEG}, s{sNC}, v{M}")
        def fma(i):
            e(f"v_fma_f32 v{2*i}, v{2*i}, s{sC}, v{NEG}")
            e(f"v_fma_f32 v{2*i+1}, v{2*i+1}, s{sC}, v{NEG}")
        def ex(i):
            e(f"v_exp_f32 v{2*i}, v{2*i}")
            e(f"v_exp_f32 v{2*i+1}, v{2*i+1}")
        def fin(i):
            if i == 0:
                e(f"v_mov_b32 v{SUM}, v0")
                e(f"v_mov_b32 v{SUM+1}, v1")
            else:
                e(f"v_add_f32 v{SUM}, v{SUM}, v{2*i}")
                e(f"v_add_f32 v{SUM+1}, v{SUM+1}, v{2*i+1}")
            e(f"v_cvt_pk_bf16_f32 v{i}, v{2*i}, v{2*i+1}")
        fma(0); fma(1); ex(0)
        for i in range(64):
            if i + 2 < 64: fma(i + 2)
            if i + 1 < 64: ex(i + 1)
            else: e("s_nop 0")
            fin(i)
        e(f"v_add_f32 v{SUM}, v{SUM}, v{SUM+1}")
        e(f"v_mov_b32 v{SUM+1}, v{SUM}")
        e("s_nop 1")
        e(f"v_permlane32_swap_b32 v{SUM}, v{SUM+1}")
        e(f"v_add_f32 v{SUM}, v{SUM}, v{SUM+1}")
        e(f"v_rcp_f32 v{INV}, v{SUM}")
        return o

    def ochunk_list(self, cc):
        o = []
        b = otile(2 * cc)
        for i in range(4):
            for k in range(8):
                o.append(f"v_mul_f32 v{b+8*i+k}, v{b+8*i+k}, v{INV}")
            for k in range(4):
                o.append(f"v_cvt_pk_bf16_f32 v{b+4*i+k}, v{b+8*i+2*k}, v{b+8*i+2*k+1}")
        o += self.transp([b, b + 4, b + 8, b + 12], b + 16)
        return o

    def spread(self, lst, extra, first=0):
        n, m = len(lst), len(extra)
        pos = {}
        for k in range(m):
            pos.setdefault(first + (k * (n - first)) // m, []).append(extra[k])
        for i, s in enumerate(lst):
            for x in pos.get(i, []):
                self.vm(*x)
            if not self.a.nocompute:
                self.e(s)

    def sync(self, t):
        e = self.e
        self.adv_cons()
        self.trace(TR0)
        self.wait_for(f"T{(t+1)%8}", t == 7)
        e("s_barrier")
        self.trace(TR1, True)
        if t == 2:
            self.c("from here on the loads belong to the next head: past the last head make them out of range")
            e(f"s_cmp_eq_u32 s{sREM}, 1")
            for srd in (SQ, SK, SV):
                e(f"s_cselect_b32 s{srd+2}, 0, s{srd+2}")
        pt = t + NS
        if pt < 8:
            self.dma(pt, sCUR, f"T{pt}")
        else:
            self.dma(pt - 8, sNXT, f"T{pt-8}")

    def build(self):
        e, a = self.e, self.a
        lds = NS * TILE
        self.o.append(HEADER + f"; @launch grid=(256,1,1) block=(512,1,1) lds={lds}")
        self.o.append('.amdgcn_target "amdgcn-amd-amdhsa--gfx950"')
        self.o.append(".text")
        self.o.append(f".globl {NAME}_kernel")
        self.o.append(".p2align 8")
        self.o.append(f".type {NAME}_kernel,@function")
        self.lab(f"{NAME}_kernel")
        qd = [int(x) for x in a.qdist.split(",")]
        assert sum(qd) == 12 and len(qd) == 4
        self.pro_order = ["Q", 0, 1, 2, 3, 4, 5] if a.qfirst else [0, "Q", 1, 2, 3, 4, 5]
        self.prologue()
        self.o.append(".p2align 6")
        self.lab("L_head")
        self.c("---- Q: wait, transpose")
        self.wait_for("Q", False)
        if not a.nocompute:
            for cc in range(3):
                for s in self.transp([qslot(x) for x in QLD[cc]], qslot(QTMP[cc])):
                    e(s)
        spos = [int(x) for x in a.spos.split(",")]
        for kt in range(4):
            self.c(f"---- K{kt}")
            sides = {}
            if kt < 3:
                for j in range(4):
                    sides.setdefault(spos[j], []).append(self.ostore(kt, j))
            self.kstep(kt, sides)
            self.sync(kt)
            if kt == 2:
                e(f"s_mov_b32 s{SO+2}, {0 if a.nostore else TENSOR_BYTES}")
        self.c("---- softmax")
        ql = [self.qload(k, sNXT, sNXT2) for k in range(12)]
        self.spread(self.softmax_list(), ql[:qd[0]])
        ql = ql[qd[0]:]
        for vt in range(4):
            self.c(f"---- V{vt}")
            sides = {}
            if vt < 3:
                n = qd[vt + 1]
                for k in range(n):
                    sides.setdefault(2 + (k * 20) // max(n, 1), []).append(ql[k])
                ql = ql[n:]
            self.vstep(vt, sides)
            self.sync(4 + vt)
        self.c("---- O: normalise, pack, transpose")
        if not a.nocompute:
            for cc in range(3):
                for s in self.ochunk_list(cc):
                    e(s)
        e(f"s_mov_b32 s{sPRV}, s{sCUR}")
        e(f"s_add_u32 s{sPRV2}, s{sCUR}, 6144")
        e(f"s_mov_b32 s{sCUR}, s{sNXT}")
        e(f"s_add_u32 s{sNXT}, s{sNXT}, {self.hstep}")
        e(f"s_add_u32 s{sNXT2}, s{sNXT}, 6144")
        e(f"s_sub_u32 s{sREM}, s{sREM}, 1")
        e(f"s_cmp_lg_u32 s{sREM}, 0")
        e("s_cbranch_scc1 L_head")
        self.c("---- last head's stores")
        for cc in range(3):
            for j in range(4):
                e(self.ostore(cc, j)[0])
        e("s_waitcnt vmcnt(0)")
        if a.stamp:
            e("s_memrealtime s[54:55]")
            e("s_memtime s[56:57]")
            e("s_getreg_b32 s58, hwreg(HW_REG_XCC_ID)")
            e("s_waitcnt lgkmcnt(0)")
            e(f"s_lshl_b32 s59, s2, 3")
            e(f"s_add_u32 s59, s59, s{sW}")
            e(f"s_lshl_b32 s59, s59, 5")
            e("s_mov_b32 s60, s48")
            e("s_and_b32 s61, s49, 0xffff")
            e("s_mov_b32 s62, 65536")
            e("s_mov_b32 s63, 0x20000")
            for k, r in enumerate((50, 51, 54, 55, 52, 56, 58, 2)):
                e(f"v_mov_b32 v{k}, s{r}")
            e("v_mov_b32 v8, 0")
            e("s_mov_b64 exec, 1")
            e("buffer_store_dwordx4 v[0:3], v8, s[60:63], s59 offen")
            e("buffer_store_dwordx4 v[4:7], v8, s[60:63], s59 offen offset:16")
            if a.trace:
                e("s_mov_b64 exec, -1")
                e("s_mov_b32 s62, 0x1000000")
                e("v_mbcnt_lo_u32_b32 v8, -1, 0")
                e("v_mbcnt_hi_u32_b32 v8, -1, v8")
                e("v_lshlrev_b32 v8, 2, v8")
                e("s_lshl_b32 s59, s59, 4")
                e("s_add_u32 s59, s59, 65536")
                e(f"buffer_store_dword v{TR0}, v8, s[60:63], s59 offen")
                e(f"buffer_store_dword v{TR1}, v8, s[60:63], s59 offen offset:256")
            e("s_waitcnt vmcnt(0)")
        self.lab("L_end")
        e("s_endpgm")
        self.resolve_waits()
        self.o.append(f""".section .rodata,"a"
.p2align 6
.amdhsa_kernel {NAME}_kernel
  .amdhsa_next_free_vgpr {NV}
  .amdhsa_next_free_sgpr 72
  .amdhsa_accum_offset {NV}
  .amdhsa_group_segment_fixed_size 0
  .amdhsa_kernarg_size 48
  .amdhsa_user_sgpr_count 2
  .amdhsa_user_sgpr_kernarg_segment_ptr 1
  .amdhsa_system_sgpr_workgroup_id_x 1
.end_amdhsa_kernel
""")
        return "\n".join(self.o)

    def resolve_waits(self):
        body, pro = self.ops, self.pro_ops
        for (idx, tag, pos, inpro, ppos) in self.waits:
            cands = []
            if inpro:
                seqs = [pro[:ppos]]
            else:
                seqs = [pro + body[:pos], body + body[:pos]]
            for seq in seqs:
                last = max(i for i, t in enumerate(seq) if t == tag)
                cands.append(len(seq) - 1 - last)
            n = min(cands)
            assert n <= 63
            self.o[idx] = f"    s_waitcnt vmcnt({n})"

if __name__ == "__main__":
    ap = argparse.ArgumentParser()
    ap.add_argument("-o", default=f"cdna_kernels/{NAME}.s")
    ap.add_argument("--ld", default="nt")
    ap.add_argument("--ldq", default=None)
    ap.add_argument("--st", default="")
    ap.add_argument("--pk", type=int, default=4)
    ap.add_argument("--pv", type=int, default=4)
    ap.add_argument("--qdist", default="12,0,0,0")
    ap.add_argument("--spos", default="3,8,13,18")
    for k in ("nocompute", "nostore", "stamp", "noload", "trace", "qfirst"):
        ap.add_argument("--" + k, action="store_true")
    a = ap.parse_args()
    open(a.o, "w").write(G(a).build())
```

```python
import struct, math, sys, argparse

NAME = "standalone__mha_softmax__near_ridge"
HEAD_BYTES = 256 * 384
TENSOR_BYTES = 1024 * HEAD_BYTES
TILE = 64 * 384
NS = 6
NH = 4

def f32hex(x):
    return "0x%08x" % struct.unpack("<I", struct.pack("<f", x))[0]

HEADER = """; Kernarg layout for this problem (48 bytes, ptrs only, base s[0:1]):
"""

S0 = 0
QR = 128
XR = 180
FB = 212
TR0, TR1 = 236, 237
MX = 238
VD = 244
VA0 = 247
VB0 = 248
VC = 249
VQO = 253
INV = 254
NV = 256

SQ, SK, SV, SO = 12, 16, 20, 24
sW, sW3, sCUR, sNXT, sPROD, sCONS, sREM, sC, sNC, sT, sNXT2, sPRV, sPRV2, sPLIM = range(32, 46)

def otile(t):
    return 64 + 16 * t if t < 4 else XR + 16 * (t - 4)
def qslot(n):
    return QR + 4 * n
QLD = [[1 + 4 * cc + j for j in range(4)] for cc in range(3)]
QTMP = [0, 3, 7]
QFIN = [[QTMP[cc], QLD[cc][1], QLD[cc][0], QLD[cc][3]] for cc in range(3)]
def qfrag(s):
    return qslot(QFIN[s // 4][s % 4])

def cost(s):
    return 2 if s.startswith("v_exp") or s.startswith("v_rcp") else 1

class Path:
    def __init__(self):
        self.pro, self.body, self.waits, self.inpro = [], [], [], True

class G:
    def __init__(self, a):
        self.a = a
        fl = lambda s: "".join(" " + x for x in s.split(",") if x)
        self.ld, self.st, self.ldq = fl(a.ld), fl(a.st), fl(a.ldq if a.ldq is not None else a.ld)
        self.o = []
        self.nlab = 0
        self.common = []
        self.p = None
    def e(self, s):
        self.o.append("    " + s)
    def lab(self, s):
        self.o.append(s + ":")
    def c(self, s):
        self.o.append("    ; " + s)
    def vm(self, s, tag):
        self.e(s)
        (self.p.pro if self.p.inpro else self.p.body).append(tag)
    def emit(self, x):
        if isinstance(x, tuple): self.vm(*x)
        else: self.e(x)
    def wait_for(self, tag):
        self.o.append(None)
        p = self.p
        p.waits.append((len(self.o) - 1, tag, p.inpro, len(p.pro) if p.inpro else len(p.body)))

    def trace(self, vreg, inc=False):
        if not self.a.trace:
            return
        e = self.e
        e("s_memtime s[64:65]")
        e("s_mov_b32 m0, s66")
        e("s_waitcnt lgkmcnt(0)")
        e(f"v_writelane_b32 v{vreg}, s64, m0")
        if inc:
            e("s_add_u32 s66, s66, 1")

    def dma_list(self, t, rel, hd):
        srd = SK if t < 4 else SV
        headreg = sNXT if rel else sCUR
        off = (t % 4) * TILE
        o = []
        if rel:
            o += [f"s_cmp_eq_u32 s{sREM}, 1", f"s_cselect_b32 s{srd+2}, 0, s{srd+2}"]
        o.append(f"s_mov_b32 m0, s{sPROD}")
        if off:
            o.append(f"s_add_u32 s{sT}, s{headreg}, {off}")
            so = sT
        else:
            o.append("s_nop 0")
            so = headreg
        for i in range(3):
            of = f" offset:{1024*i}" if i else ""
            o.append((f"buffer_load_dwordx4 v{VD+i}, s[{srd}:{srd+3}], s{so} offen{of}{self.ld} lds", ("T", t, hd)))
        o += [f"s_add_u32 s{sPROD}, s{sPROD}, {TILE}",
              f"s_cmp_eq_u32 s{sPROD}, s{sPLIM}",
              f"s_cselect_b32 s{sPROD}, s{sW3}, s{sPROD}"]
        return o
    def qload(self, k, h0, h1, hd):
        cc, j = k // 4, k % 4
        r = qslot(QLD[cc][j])
        so = h1 if j >= 2 else h0
        off = (j & 1) * 3072 + 128 * cc
        o = f" offset:{off}" if off else ""
        return (f"buffer_load_dwordx4 v[{r}:{r+3}], v{VQO}, s[{SQ}:{SQ+3}], s{so} offen{o}{self.ldq}", ("Q", cc, hd))
    def oregs(self, cc):
        b = otile(2 * cc)
        return [b + 16, b + 4, b + 0, b + 12]
    def ostore(self, cc, j):
        r = self.oregs(cc)[j]
        so = sPRV2 if j >= 2 else sPRV
        off = (j & 1) * 3072 + 128 * cc
        o = f" offset:{off}" if off else ""
        return (f"buffer_store_dwordx4 v[{r}:{r+3}], v{VQO}, s[{SO}:{SO+3}], s{so} offen{o}{self.st}", ("O", cc, -1))

    def transp(self, L, T):
        out = []
        for (a, b, d) in ((L[0], L[1], T), (L[2], L[3], L[0])):
            for k in range(4):
                out.append(f"v_cndmask_b32_dpp v{d+k}, v{b+k}, v{a+k}, vcc row_ror:8 row_mask:0xf bank_mask:0xf")
            for k in range(4):
                out.append(f"v_mov_b32_dpp v{b+k}, v{a+k} row_ror:8 row_mask:0xf bank_mask:0x3")
        F = [T, L[1], L[0], L[3]]
        for (a, b) in ((F[0], F[2]), (F[1], F[3])):
            for k in range(4):
                out.append(f"v_permlane16_swap_b32 v{a+k}, v{b+k}")
        return out

    def adv_cons(self):
        e = self.e
        e(f"s_add_u32 s{sCONS}, s{sCONS}, {TILE}")
        e(f"s_cmp_eq_u32 s{sCONS}, {NS*TILE}")
        e(f"s_cselect_b32 s{sCONS}, 0, s{sCONS}")

    def prologue(self):
        e, a = self.e, self.a
        e("s_cmp_ge_u32 s2, 256")
        e("s_cbranch_scc1 L_end")
        if a.stamp:
            e("s_memrealtime s[50:51]")
            e("s_memtime s[52:53]")
            e("s_load_dwordx2 s[48:49], s[0:1], 40")
            e("s_mov_b32 s66, 0")
        e("s_load_dwordx8 s[4:11], s[0:1], 0")
        e("v_and_b32 v1, 63, v0                 ; lane")
        e("v_lshrrev_b32 v2, 6, v0              ; wave")
        e("v_lshrrev_b32 v3, 3, v1              ; lane/8")
        e(f"v_readfirstlane_b32 s{sW}, v2")
        e("v_and_b32 v4, 7, v1                  ; lane%8")
        e("v_and_b32 v5, 1, v2")
        e("v_lshlrev_b32 v5, 1, v5              ; (w&1)<<1")
        e("v_mul_u32_u24 v6, 3072, v2           ; w*3072")
        e("v_lshl_add_u32 v6, v3, 7, v6         ; + (lane/8)*128")
        for i in range(3):
            e(f"v_add_u32 v7, {8*i}, v3")
            e("v_mul_u32_u24 v7, 11, v7")
            e("v_lshrrev_b32 v7, 5, v7")
            e("v_bfe_u32 v8, v7, 1, 1")
            e("v_lshlrev_b32 v8, 2, v8")
            e("v_bfe_u32 v9, v7, 2, 1")
            e("v_or3_b32 v8, v8, v9, v5             ; f(row)")
            e("v_xor_b32 v8, v8, v4")
            e(f"v_lshl_add_u32 v{VD+i}, v8, 4, v6")
        e("v_lshrrev_b32 v8, 5, v1              ; h")
        e("v_lshl_add_u32 v11, v2, 5, v4")
        e("v_mul_u32_u24 v11, 384, v11")
        e("v_and_b32 v12, 3, v3")
        e("v_lshl_add_u32 v11, v12, 5, v11")
        e(f"v_lshl_add_u32 v{VQO}, v8, 4, v11   ; (32w + lane%8)*384 + 32*((lane>>3)&3) + 16h")
        e(f"s_mul_i32 s{sW3}, s{sW}, 3072")
        e(f"s_mov_b32 s{sPROD}, s{sW3}")
        e(f"s_add_u32 s{sPLIM}, s{sW3}, {NS*TILE}")
        e(f"s_mul_i32 s{sCUR}, s2, {HEAD_BYTES}")
        self.hstep = 256 * HEAD_BYTES
        e(f"s_add_u32 s{sNXT2}, s{sCUR}, 6144")
        e("s_waitcnt lgkmcnt(0)")
        for srd, p, n in ((SQ, 4, TENSOR_BYTES), (SK, 6, TENSOR_BYTES), (SV, 8, TENSOR_BYTES), (SO, 10, 0)):
            if a.noload and srd != SO:
                n = 0
            e(f"s_mov_b32 s{srd}, s{p}")
            e(f"s_and_b32 s{srd+1}, s{p+1}, 0xffff")
            e(f"s_mov_b32 s{srd+2}, {n}")
            e(f"s_mov_b32 s{srd+3}, 0x20000")
        for step in self.pro_order:
            if step == "Q":
                for k in range(12):
                    self.vm(*self.qload(k, sCUR, sNXT2, 0))
            else:
                for x in self.dma_list(step, 0, 0):
                    self.emit(x)
        e("v_and_b32 v7, 31, v1                 ; m")
        e("v_bfe_u32 v9, v7, 1, 1")
        e("v_lshlrev_b32 v9, 2, v9")
        e("v_bfe_u32 v10, v7, 2, 2")
        e("v_or_b32 v9, v9, v10                 ; f(m)")
        e("v_xor_b32 v9, v9, v8                 ; f(m)^h")
        e("v_mul_u32_u24 v10, 384, v7           ; m*384")
        e(f"v_lshl_add_u32 v{VA0}, v9, 4, v10")
        e("v_bfe_u32 v9, v1, 2, 2               ; r")
        e("v_lshl_add_u32 v10, v8, 2, v9        ; 4h+r")
        e("v_mul_u32_u24 v10, 384, v10")
        e("v_bfe_u32 v11, v1, 1, 1              ; cc>>1")
        e("v_lshl_add_u32 v10, v11, 3, v10      ; base")
        e("v_bfe_u32 v11, v1, 3, 1              ; r>>1")
        e("v_lshlrev_b32 v11, 2, v11")
        e("v_bfe_u32 v12, v1, 4, 1              ; up")
        e("v_lshlrev_b32 v12, 1, v12")
        e("v_and_b32 v13, 1, v1")
        e("v_xor_b32 v13, v13, v8               ; (cc&1)^h")
        e("v_or3_b32 v11, v11, v12, v13         ; x")
        e(f"v_lshl_add_u32 v{VB0}, v11, 4, v10")
        e(f"s_mov_b32 s{sCONS}, 0")
        e(f"s_mov_b32 s{sREM}, {NH}")
        c = 192 ** -0.5 * math.log2(math.e)
        e(f"s_mov_b32 s{sC}, {f32hex(c)}")
        e(f"s_mov_b32 s{sNC}, {f32hex(-c)}")
        e(f"s_add_u32 s{sNXT}, s{sCUR}, {self.hstep}")
        e(f"s_add_u32 s{sNXT2}, s{sNXT}, 6144")
        e(f"s_mov_b32 s{sPRV}, s{sCUR}")
        e(f"s_mov_b32 s{sPRV2}, s{sCUR}")
        e("s_mov_b32 vcc_lo, 0x00ff00ff")
        e("s_mov_b32 vcc_hi, 0x00ff00ff")

    def pipeline(self, items, depth, rpf, sides):
        e = self.e
        n = len(items)
        if self.a.nocompute:
            for j in sorted(sides):
                for x in sides[j]:
                    if isinstance(x, tuple) or x.startswith("s_"): self.emit(x)
                    elif x is None: pass
            return
        for j in range(min(depth, n)):
            for r in items[j][0](FB + 4 * (j % depth)):
                e(r)
        for x in sides.get(-1, []):
            self.emit(x)
        for j in range(n):
            issued = min(j + depth, n)
            e(f"s_waitcnt lgkmcnt({(issued - j - 1) * rpf})")
            e(items[j][1](FB + 4 * (j % depth)))
            if j + depth < n:
                for r in items[j + depth][0](FB + 4 * (j % depth)):
                    e(r)
            for x in sides.get(j, []):
                self.emit(x)

    def kstep(self, kt, sides):
        e = self.e
        e(f"v_add_u32 v{VC}, s{sCONS}, v{VA0}")
        for u in range(1, 4):
            e(f"v_xor_b32 v{VC+u}, {u<<5}, v{VC}")
        items = []
        for s in range(12):
            for st in range(2):
                D = S0 + 16 * (2 * kt + st)
                def rd(b, s=s, st=st):
                    return [f"ds_read_b128 v[{b}:{b+3}], v{VC+s%4} offset:{st*12288+128*(s//4)}"]
                def mf(b, s=s, D=D):
                    C = "0" if s == 0 else f"v[{D}:{D+15}]"
                    q = qfrag(s)
                    return f"v_mfma_f32_32x32x16_bf16 v[{D}:{D+15}], v[{b}:{b+3}], v[{q}:{q+3}], {C}"
                items.append((rd, mf))
        self.pipeline(items, self.a.pk, 1, sides)
        self.adv_cons()

    def vstep(self, vt, sides):
        e = self.e
        e(f"v_add_u32 v{VC}, s{sCONS}, v{VB0}")
        for u in range(1, 4):
            e(f"v_xor_b32 v{VC+u}, {u<<5}, v{VC}")
        items = []
        for ks in range(4):
            for t in range(6):
                D = otile(t)
                P = 8 * (2 * vt + ks // 2) + 4 * (ks % 2)
                def rd(b, ks=ks, t=t):
                    off = ks * 6144 + (t // 2) * 128
                    return [f"ds_read_b64_tr_b16 v[{b}:{b+1}], v{VC+2*(t%2)} offset:{off}",
                            f"ds_read_b64_tr_b16 v[{b+2}:{b+3}], v{VC+2*(t%2)+1} offset:{off+3072}"]
                def mf(b, ks=ks, D=D, P=P, vt=vt):
                    C = "0" if (vt == 0 and ks == 0) else f"v[{D}:{D+15}]"
                    return f"v_mfma_f32_32x32x16_bf16 v[{D}:{D+15}], v[{b}:{b+3}], v[{P}:{P+3}], {C}"
                items.append((rd, mf))
        self.pipeline(items, self.a.pv, 2, sides)
        self.adv_cons()

    def max_list(self, tiles, first):
        o = []
        vals = [16 * t + i for t in tiles for i in range(16)]
        k = 0
        if first:
            o.append(f"v_max_f32 v{MX}, v{vals[0]}, v{vals[1]}")
            o.append(f"v_max_f32 v{MX+1}, v{vals[2]}, v{vals[3]}")
            k = 4
        ch = 0
        while k < len(vals):
            o.append(f"v_max3_f32 v{MX+ch}, v{MX+ch}, v{vals[k]}, v{vals[k+1]}")
            ch ^= 1
            k += 2
        return o

    def softmax_list(self, maxdone):
        a = self.a
        o = []
        e = o.append
        M, NEG, SUM = MX, MX + 2, MX + 4
        o += self.max_list(list(range(maxdone, 8)), maxdone == 0)
        e(f"v_max_f32 v{M}, v{M}, v{M+1}")
        e(f"v_mov_b32 v{M+1}, v{M}")
        e("s_nop 1")
        e(f"v_permlane32_swap_b32 v{M}, v{M+1}")
        e(f"v_max_f32 v{M}, v{M}, v{M+1}")
        e(f"v_mul_f32 v{NEG}, s{sNC}, v{M}")
        if a.pkfma:
            e(f"v_mov_b32 v{NEG+1}, s{sC}")
        def fma(i):
            if a.pkfma:
                e(f"v_pk_fma_f32 v[{2*i}:{2*i+1}], v[{2*i}:{2*i+1}], v[{NEG}:{NEG+1}], v[{NEG}:{NEG+1}] op_sel:[0,1,0] op_sel_hi:[1,1,0]")
            else:
                e(f"v_fma_f32 v{2*i}, v{2*i}, s{sC}, v{NEG}")
                e(f"v_fma_f32 v{2*i+1}, v{2*i+1}, s{sC}, v{NEG}")
        def ex(i):
            e(f"v_exp_f32 v{2*i}, v{2*i}")
            e(f"v_exp_f32 v{2*i+1}, v{2*i+1}")
        def fin(i):
            if i == 0:
                e(f"v_mov_b32 v{SUM}, v0")
                e(f"v_mov_b32 v{SUM+1}, v1")
            elif a.pkadd:
                e(f"v_pk_add_f32 v[{SUM}:{SUM+1}], v[{SUM}:{SUM+1}], v[{2*i}:{2*i+1}]")
            else:
                e(f"v_add_f32 v{SUM}, v{SUM}, v{2*i}")
                e(f"v_add_f32 v{SUM+1}, v{SUM+1}, v{2*i+1}")
            e(f"v_cvt_pk_bf16_f32 v{i}, v{2*i}, v{2*i+1}")
        fma(0); fma(1); ex(0)
        for i in range(64):
            if i + 2 < 64: fma(i + 2)
            if i + 1 < 64: ex(i + 1)
            else: e("s_nop 0")
            fin(i)
        e(f"v_add_f32 v{SUM}, v{SUM}, v{SUM+1}")
        e(f"v_mov_b32 v{SUM+1}, v{SUM}")
        e("s_nop 1")
        e(f"v_permlane32_swap_b32 v{SUM}, v{SUM+1}")
        e(f"v_add_f32 v{SUM}, v{SUM}, v{SUM+1}")
        e(f"v_rcp_f32 v{INV}, v{SUM}")
        return o

    def ochunk_list(self, cc):
        o = []
        b = otile(2 * cc)
        for i in range(4):
            if self.a.pkmul:
                for k in range(4):
                    r = b + 8 * i + 2 * k
                    o.append(f"v_pk_mul_f32 v[{r}:{r+1}], v[{r}:{r+1}], v[{INV}:{INV+1}] op_sel_hi:[1,0]")
            else:
                for k in range(8):
                    o.append(f"v_mul_f32 v{b+8*i+k}, v{b+8*i+k}, v{INV}")
            for k in range(4):
                o.append(f"v_cvt_pk_bf16_f32 v{b+4*i+k}, v{b+8*i+2*k}, v{b+8*i+2*k+1}")
        o += self.transp([b, b + 4, b + 8, b + 12], b + 16)
        return o
    def qt_list(self, cc):
        return self.transp([qslot(x) for x in QLD[cc]], qslot(QTMP[cc]))

    def valu_phase(self, lst, extra):
        n, m = len(lst), len(extra)
        pos = {}
        for k in range(m):
            pos.setdefault((k * n) // m, []).append(extra[k])
        for i, s in enumerate(lst):
            for grp in pos.get(i, []):
                for x in grp: self.emit(x)
            if s is None: continue
            if isinstance(s, tuple) and s[0] == "WAIT":
                self.wait_for(s[1]); continue
            if not self.a.nocompute:
                self.e(s)

    def spread_sides(self, groups, lo=1, hi=22):
        sides = {}
        m = len(groups)
        for k, g in enumerate(groups):
            sides.setdefault(lo + (k * (hi - lo + 1)) // m, []).extend(g)
        return sides

    def group(self, name, lag):
        e, a = self.e, self.a
        phases = self.phases
        n = len(phases)
        p = self.p
        def dma_groups(g, pro):
            out = []
            for (t, ha) in self.issue.get(g % n, []):
                if pro:
                    out.append(self.dma_list(t, 0, 0)); assert ha == 0
                else:
                    rel = ha + (1 if g >= n else 0)
                    assert rel in (0, 1), (name, g, t, ha)
                    out.append(self.dma_list(t, rel, rel))
            return out
        def end_interval(g, pro):
            self.trace(TR0)
            for (t, ha) in self.cert.get(g % n, []):
                self.wait_for(("T", t, ha if pro else ha + (1 if g >= n else 0)))
            if not pro and g >= n:
                self.nlab += 1
                e(f"s_cmp_eq_u32 s{sREM}, 1")
                e(f"s_cbranch_scc1 L_nb{self.nlab}")
                e("s_barrier")
                self.lab(f"L_nb{self.nlab}")
            else:
                e("s_barrier")
            self.trace(TR1, True)
        self.wait_for(("T", 0, 0))
        e("s_barrier")
        for g in range(lag):
            for grp in dma_groups(g, True):
                for x in grp: self.emit(x)
            end_interval(g, True)
        if a.qt_in == "E":
            self.wait_for(("Q", 2, 0))
            if not a.nocompute:
                for cc in range(3):
                    for s in self.qt_list(cc): e(s)
        p.inpro = False
        self.o.append(".p2align 6")
        self.lab(f"L_head{name}")
        sm = self.softmax_list(6 if a.maxk else 0)
        nsm = sum(1 for x in phases if x[0] == "S")
        tot = sum(cost(s) for s in sm)
        parts, acc, cur = [], 0, []
        for s in sm:
            cur.append(s); acc += cost(s)
            if len(parts) < nsm - 1 and acc >= tot * (len(parts) + 1) / nsm and not s.startswith(("s_nop", "v_mov", "v_exp")):
                parts.append(cur); cur = []
        parts.append(cur)
        ql = [self.qload(k, sNXT, sNXT2, 1) for k in range(12)]
        qpre = [f"s_cmp_eq_u32 s{sREM}, 1", f"s_cselect_b32 s{SQ+2}, 0, s{SQ+2}"]
        qdist = dict(zip(phases, [int(x) for x in a.qdist.split(",")]))
        assert sum(qdist.values()) == 12
        for pi, ph in enumerate(phases):
            g = pi + lag
            self.c(f"---- {name}: {ph} (interval {g % n})")
            kind = ph[0]
            if a.prio:
                e(f"s_setprio {a.prio if kind in 'KV' else 0}")
            groups = dma_groups(g, False)
            nq = qdist.get(ph, 0)
            for k in range(nq):
                groups.append((qpre if len(ql) == 12 else []) + [ql.pop(0)])
            if kind == "K":
                kt = int(ph[1])
                if kt < 3:
                    groups += [[self.ostore(kt, j)] for j in range(4)]
                sides = self.spread_sides(groups) if groups else {}
                if a.maxk and kt >= 1:
                    ml = self.max_list([2 * kt - 2, 2 * kt - 1], kt == 1)
                    for k, s in enumerate(ml):
                        sides.setdefault(4 + k, []).append(s)
                self.kstep(kt, sides)
                if kt == 2:
                    e(f"s_mov_b32 s{SO+2}, {0 if a.nostore else TENSOR_BYTES}")
            elif kind == "V":
                sides = self.spread_sides(groups) if groups else {}
                self.vstep(int(ph[1]), sides)
            elif kind == "S":
                self.valu_phase(parts[int(ph[1])], groups)
            elif kind == "E":
                lst = []
                for cc in range(3): lst += self.ochunk_list(cc)
                lst.append(("WAIT", ("Q", 2, 1)))
                for cc in range(3): lst += self.qt_list(cc)
                self.valu_phase(lst, groups)
            if pi == n - 1:
                e(f"s_mov_b32 s{sPRV}, s{sCUR}")
                e(f"s_add_u32 s{sPRV2}, s{sCUR}, 6144")
            end_interval(g, False)
        e(f"s_mov_b32 s{sCUR}, s{sNXT}")
        e(f"s_add_u32 s{sNXT}, s{sNXT}, {self.hstep}")
        e(f"s_add_u32 s{sNXT2}, s{sNXT}, 6144")
        e(f"s_sub_u32 s{sREM}, s{sREM}, 1")
        e(f"s_cmp_lg_u32 s{sREM}, 0")
        e(f"s_cbranch_scc1 L_head{name}")

    def check_schedule(self):
        n, lag = len(self.phases), self.a.lag
        rd = {int(ph[1]) + (4 if ph[0] == "V" else 0): i for i, ph in enumerate(self.phases) if ph[0] in "KV"}
        iss, cer = {}, {}
        for h in range(-1, 4):
            for g in range(n):
                for (t, ha) in self.issue.get(g, []): iss[8 * (h + ha) + t] = n * h + g
                for (t, ha) in self.cert.get(g, []): cer[8 * (h + ha) + t] = n * h + g
        order = sorted(iss, key=lambda x: (iss[x], x))
        assert order == sorted(order), "issue order must be stream order"
        for x in range(8, 24):
            h, t = divmod(x, 8)
            ra = n * h + rd[t]
            assert cer[x] < ra, ("cert", x)
            assert iss[x] <= cer[x], ("iss/cert", x)
            ho, to = divmod(x - NS, 8)
            assert iss[x] > n * ho + rd[to] + lag, ("slot", x, iss[x], n * ho + rd[to] + lag)
        self.pro_tiles = [t for t in range(8) if iss[t] < 0]
        assert self.pro_tiles == list(range(len(self.pro_tiles)))
        for t in range(1, 8):
            assert cer[t] >= 0, ("first-head cert", t)

    def build(self):
        e, a = self.e, self.a
        lds = NS * TILE
        self.phases = a.phases.split(",")
        n = len(self.phases)
        rd = {int(ph[1]) + (4 if ph[0] == "V" else 0): i for i, ph in enumerate(self.phases) if ph[0] in "KV"}
        dist = [int(x) for x in a.dist.split(",")]
        self.issue, self.cert = {}, {}
        for t in range(8):
            g = rd[t] - dist[t]
            self.issue.setdefault(g % n, []).append((t, 1 if g < 0 else 0))
            g = rd[t] - 1
            self.cert.setdefault(g % n, []).append((t, 1 if g < 0 else 0))
        for g in self.issue: self.issue[g].sort(key=lambda x: (x[1], x[0]))
        self.check_schedule()
        self.o.append(HEADER + f"; @launch grid=(256,1,1) block=(512,1,1) lds={lds}")
        self.o.append('.amdgcn_target "amdgcn-amd-amdhsa--gfx950"')
        self.o.append(".text")
        self.o.append(f".globl {NAME}_kernel")
        self.o.append(".p2align 8")
        self.o.append(f".type {NAME}_kernel,@function")
        self.lab(f"{NAME}_kernel")
        self.pro_order = [0, "Q"] + self.pro_tiles[1:]
        self.p = Path()
        self.prologue()
        common = list(self.p.pro)
        e(f"s_cmp_ge_u32 s{sW}, 4")
        e("s_cbranch_scc1 L_grpB")
        paths = []
        for name, lag in (("A", 0), ("B", a.lag)):
            if name == "B": self.lab("L_grpB")
            self.p = Path(); self.p.pro = list(common)
            self.group(name, lag)
            paths.append(self.p)
            if name == "A": e("s_branch L_fin")
        self.lab("L_fin")
        self.c("---- last head's stores")
        for cc in range(3):
            for j in range(4):
                e(self.ostore(cc, j)[0])
        if a.stamp:
            e("s_waitcnt vmcnt(0)")
            e("s_memrealtime s[54:55]")
            e("s_memtime s[56:57]")
            e("s_getreg_b32 s58, hwreg(HW_REG_XCC_ID)")
            e("s_waitcnt lgkmcnt(0)")
            e(f"s_lshl_b32 s59, s2, 3")
            e(f"s_add_u32 s59, s59, s{sW}")
            e(f"s_lshl_b32 s59, s59, 5")
            e("s_mov_b32 s60, s48")
            e("s_and_b32 s61, s49, 0xffff")
            e("s_mov_b32 s62, 65536")
            e("s_mov_b32 s63, 0x20000")
            for k, r in enumerate((50, 51, 54, 55, 52, 56, 58, 2)):
                e(f"v_mov_b32 v{k}, s{r}")
            e("v_mov_b32 v8, 0")
            e("s_mov_b64 exec, 1")
            e("buffer_store_dwordx4 v[0:3], v8, s[60:63], s59 offen")
            e("buffer_store_dwordx4 v[4:7], v8, s[60:63], s59 offen offset:16")
            if a.trace:
                e("s_mov_b64 exec, -1")
                e("s_mov_b32 s62, 0x1000000")
                e("v_mbcnt_lo_u32_b32 v8, -1, 0")
                e("v_mbcnt_hi_u32_b32 v8, -1, v8")
                e("v_lshlrev_b32 v8, 2, v8")
                e("s_lshl_b32 s59, s59, 4")
                e("s_add_u32 s59, s59, 65536")
                e(f"buffer_store_dword v{TR0}, v8, s[60:63], s59 offen")
                e(f"buffer_store_dword v{TR1}, v8, s[60:63], s59 offen offset:256")
        e("s_waitcnt vmcnt(0)")
        self.lab("L_end")
        e("s_endpgm")
        for p in paths: self.resolve_waits(p)
        self.o.append(f""".section .rodata,"a"
.p2align 6
.amdhsa_kernel {NAME}_kernel
  .amdhsa_next_free_vgpr {NV}
  .amdhsa_next_free_sgpr 72
  .amdhsa_accum_offset {NV}
  .amdhsa_group_segment_fixed_size 0
  .amdhsa_kernarg_size 48
  .amdhsa_user_sgpr_count 2
  .amdhsa_user_sgpr_kernarg_segment_ptr 1
  .amdhsa_system_sgpr_workgroup_id_x 1
.end_amdhsa_kernel
""")
        return "\n".join(self.o)

    def resolve_waits(self, p):
        for (idx, tag, inpro, pos) in p.waits:
            c = []
            if inpro:
                seq = p.pro[:pos]
                last = max(i for i, t in enumerate(seq) if t == tag)
                c.append(len(seq) - 1 - last)
            else:
                for it in range(NH):
                    seq = list(p.pro)
                    for j in range(it + 1):
                        b = p.body if j < it else p.body[:pos]
                        seq += [(k, x, h + j) for (k, x, h) in b]
                    want = (tag[0], tag[1], tag[2] + it)
                    last = max(i for i, t in enumerate(seq) if t == want)
                    c.append(len(seq) - 1 - last)
            nn = min(c)
            assert nn <= 63
            self.o[idx] = f"    s_waitcnt vmcnt({nn})"

if __name__ == "__main__":
    ap = argparse.ArgumentParser()
    ap.add_argument("-o", default=f"cdna_kernels/{NAME}.s")
    ap.add_argument("--ld", default="nt")
    ap.add_argument("--ldq", default=None)
    ap.add_argument("--st", default="")
    ap.add_argument("--pk", type=int, default=4)
    ap.add_argument("--pv", type=int, default=4)
    ap.add_argument("--lag", type=int, default=3)
    ap.add_argument("--prio", type=int, default=0)
    ap.add_argument("--phases", default="K0,K1,K2,K3,S0,S1,S2,V0,V1,V2,V3,E0")
    ap.add_argument("--dist", default="4,4,3,3,4,4,4,4")
    ap.add_argument("--qdist", default="0,0,0,0,4,4,4,0,0,0,0,0")
    ap.add_argument("--qt_in", default="E")
    for k in ("nocompute", "nostore", "stamp", "noload", "trace", "pkfma", "pkadd", "pkmul", "maxk"):
        ap.add_argument("--" + k, action="store_true")
    a = ap.parse_args()
    open(a.o, "w").write(G(a).build())
```

```python
import struct, math, sys, argparse

NAME = "standalone__mha_softmax__near_ridge"
HEAD_BYTES = 256 * 384
TENSOR_BYTES = 1024 * HEAD_BYTES
TILE = 64 * 384
NS = 6

def f32hex(x):
    return "0x%08x" % struct.unpack("<I", struct.pack("<f", x))[0]

HEADER = """; Kernarg layout for this problem (48 bytes, ptrs only, base s[0:1]):
"""

S0 = 0
QR = 128
XR = 180
FB = 212
TR0, TR1 = 236, 237
VD = 244
VA0 = 247
VB0 = 248
VC = 249
VQO = 253
INV = 254
NV = 256

SQ, SK, SV, SO = 12, 16, 20, 24
sW, sW3, sCUR, sNXT, sPROD, sCONS, sREM, sC, sNC, sT, sNXT2, sPRV, sPRV2, sPLIM = range(32, 46)

def otile(t):
    return 64 + 16 * t if t < 4 else XR + 16 * (t - 4)

def qslot(n):
    return QR + 4 * n
QLD = [[1 + 4 * cc + j for j in range(4)] for cc in range(3)]
QTMP = [0, 3, 7]
QFIN = [[QTMP[cc], QLD[cc][1], QLD[cc][0], QLD[cc][3]] for cc in range(3)]
def qfrag(s):
    return qslot(QFIN[s // 4][s % 4])

class G:
    def __init__(self, a):
        self.a = a
        fl = lambda s: "".join(" " + x for x in s.split(",") if x)
        self.ld, self.st, self.ldq = fl(a.ld), fl(a.st), fl(a.ldq if a.ldq is not None else a.ld)
        self.o = []
        self.ops = []
        self.waits = []
        self.pro_ops = []
        self.inpro = False
    def e(self, s):
        self.o.append("    " + s)
    def lab(self, s):
        self.o.append(s + ":")
    def c(self, s):
        self.o.append("    ; " + s)
    def vm(self, s, tag):
        self.e(s)
        (self.pro_ops if self.inpro else self.ops).append(tag)
    def wait_for(self, tag, nxt):
        self.o.append(None)
        self.waits.append((len(self.o) - 1, tag, len(self.ops), self.inpro, len(self.pro_ops)))

    def trace(self, vreg, inc=False):
        if not self.a.trace:
            return
        e = self.e
        e("s_memtime s[64:65]")
        e("s_mov_b32 m0, s66")
        e("s_waitcnt lgkmcnt(0)")
        e(f"v_writelane_b32 v{vreg}, s64, m0")
        if inc:
            e("s_add_u32 s66, s66, 1")

    def dma_instrs(self, t, headreg):
        srd = SK if t < 4 else SV
        off = (t % 4) * TILE
        pre = [f"s_mov_b32 m0, s{sPROD}"]
        if off:
            pre.append(f"s_add_u32 s{sT}, s{headreg}, {off}")
            so = sT
        else:
            pre.append("s_nop 0")
            so = headreg
        ld = []
        for i in range(3):
            o = f" offset:{1024*i}" if i else ""
            ld.append(f"buffer_load_dwordx4 v{VD+i}, s[{srd}:{srd+3}], s{so} offen{o}{self.ld} lds")
        post = [f"s_add_u32 s{sPROD}, s{sPROD}, {TILE}",
                f"s_cmp_eq_u32 s{sPROD}, s{sPLIM}",
                f"s_cselect_b32 s{sPROD}, s{sW3}, s{sPROD}"]
        return pre, ld, post
    def dma(self, t, headreg, tag):
        pre, ld, post = self.dma_instrs(t, headreg)
        for s in pre: self.e(s)
        for s in ld: self.vm(s, tag)
        for s in post: self.e(s)
    def qload(self, k, h0, h1):
        cc, j = k // 4, k % 4
        r = qslot(QLD[cc][j])
        so = h1 if j >= 2 else h0
        off = (j & 1) * 3072 + 128 * cc
        o = f" offset:{off}" if off else ""
        return (f"buffer_load_dwordx4 v[{r}:{r+3}], v{VQO}, s[{SQ}:{SQ+3}], s{so} offen{o}{self.ldq}", "Q")
    def oregs(self, cc):
        b = otile(2 * cc)
        return [b + 16, b + 4, b + 0, b + 12]
    def ostore(self, cc, j):
        r = self.oregs(cc)[j]
        so = sPRV2 if j >= 2 else sPRV
        off = (j & 1) * 3072 + 128 * cc
        o = f" offset:{off}" if off else ""
        return (f"buffer_store_dwordx4 v[{r}:{r+3}], v{VQO}, s[{SO}:{SO+3}], s{so} offen{o}{self.st}", "O")

    def transp(self, L, T):
        out = []
        for (a, b, d) in ((L[0], L[1], T), (L[2], L[3], L[0])):
            for k in range(4):
                out.append(f"v_cndmask_b32_dpp v{d+k}, v{b+k}, v{a+k}, vcc row_ror:8 row_mask:0xf bank_mask:0xf")
            for k in range(4):
                out.append(f"v_mov_b32_dpp v{b+k}, v{a+k} row_ror:8 row_mask:0xf bank_mask:0x3")
        F = [T, L[1], L[0], L[3]]
        for (a, b) in ((F[0], F[2]), (F[1], F[3])):
            for k in range(4):
                out.append(f"v_permlane16_swap_b32 v{a+k}, v{b+k}")
        return out

    def adv_cons(self):
        e = self.e
        e(f"s_add_u32 s{sCONS}, s{sCONS}, {TILE}")
        e(f"s_cmp_eq_u32 s{sCONS}, {NS*TILE}")
        e(f"s_cselect_b32 s{sCONS}, 0, s{sCONS}")

    def prologue(self):
        e, a = self.e, self.a
        e("s_cmp_ge_u32 s2, 256")
        e("s_cbranch_scc1 L_end")
        if a.stamp:
            e("s_memrealtime s[50:51]")
            e("s_memtime s[52:53]")
            e("s_load_dwordx2 s[48:49], s[0:1], 40")
            e("s_mov_b32 s66, 0")
        e("s_load_dwordx8 s[4:11], s[0:1], 0")
        e("v_and_b32 v1, 63, v0                 ; lane")
        e("v_lshrrev_b32 v2, 6, v0              ; wave")
        e("v_lshrrev_b32 v3, 3, v1              ; lane/8")
        e(f"v_readfirstlane_b32 s{sW}, v2")
        e("v_and_b32 v4, 7, v1                  ; lane%8")
        e("v_and_b32 v5, 1, v2")
        e("v_lshlrev_b32 v5, 1, v5              ; (w&1)<<1")
        e("v_mul_u32_u24 v6, 3072, v2           ; w*3072")
        e("v_lshl_add_u32 v6, v3, 7, v6         ; + (lane/8)*128")
        for i in range(3):
            e(f"v_add_u32 v7, {8*i}, v3")
            e("v_mul_u32_u24 v7, 11, v7")
            e("v_lshrrev_b32 v7, 5, v7")
            e("v_bfe_u32 v8, v7, 1, 1")
            e("v_lshlrev_b32 v8, 2, v8")
            e("v_bfe_u32 v9, v7, 2, 1")
            e("v_or3_b32 v8, v8, v9, v5             ; f(row)")
            e("v_xor_b32 v8, v8, v4")
            e(f"v_lshl_add_u32 v{VD+i}, v8, 4, v6")
        e("v_lshrrev_b32 v8, 5, v1              ; h")
        e("v_lshl_add_u32 v11, v2, 5, v4")
        e("v_mul_u32_u24 v11, 384, v11")
        e("v_and_b32 v12, 3, v3")
        e("v_lshl_add_u32 v11, v12, 5, v11")
        e(f"v_lshl_add_u32 v{VQO}, v8, 4, v11")
        e(f"s_mul_i32 s{sW3}, s{sW}, 3072")
        e(f"s_mov_b32 s{sPROD}, s{sW3}")
        e(f"s_add_u32 s{sPLIM}, s{sW3}, {NS*TILE}")
        e(f"s_mul_i32 s{sCUR}, s2, {HEAD_BYTES}")
        self.hstep = 256 * HEAD_BYTES
        e(f"s_add_u32 s{sNXT2}, s{sCUR}, 6144")
        e("s_waitcnt lgkmcnt(0)")
        for srd, p, n in ((SQ, 4, TENSOR_BYTES), (SK, 6, TENSOR_BYTES), (SV, 8, TENSOR_BYTES), (SO, 10, 0)):
            if a.noload and srd != SO:
                n = 0
            e(f"s_mov_b32 s{srd}, s{p}")
            e(f"s_and_b32 s{srd+1}, s{p+1}, 0xffff")
            e(f"s_mov_b32 s{srd+2}, {n}")
            e(f"s_mov_b32 s{srd+3}, 0x20000")
        self.inpro = True
        for step in self.pro_order:
            if step == "Q":
                for k in range(12):
                    self.vm(*self.qload(k, sCUR, sNXT2))
            else:
                self.dma(step, sCUR, f"T{step}")
        e("v_and_b32 v7, 31, v1                 ; m")
        e("v_bfe_u32 v9, v7, 1, 1")
        e("v_lshlrev_b32 v9, 2, v9")
        e("v_bfe_u32 v10, v7, 2, 2")
        e("v_or_b32 v9, v9, v10                 ; f(m)")
        e("v_xor_b32 v9, v9, v8                 ; f(m)^h")
        e("v_mul_u32_u24 v10, 384, v7           ; m*384")
        e(f"v_lshl_add_u32 v{VA0}, v9, 4, v10")
        e("v_bfe_u32 v9, v1, 2, 2               ; r")
        e("v_lshl_add_u32 v10, v8, 2, v9        ; 4h+r")
        e("v_mul_u32_u24 v10, 384, v10")
        e("v_bfe_u32 v11, v1, 1, 1              ; cc>>1")
        e("v_lshl_add_u32 v10, v11, 3, v10      ; base")
        e("v_bfe_u32 v11, v1, 3, 1              ; r>>1")
        e("v_lshlrev_b32 v11, 2, v11")
        e("v_bfe_u32 v12, v1, 4, 1              ; up")
        e("v_lshlrev_b32 v12, 1, v12")
        e("v_and_b32 v13, 1, v1")
        e("v_xor_b32 v13, v13, v8               ; (cc&1)^h")
        e("v_or3_b32 v11, v11, v12, v13         ; x")
        e(f"v_lshl_add_u32 v{VB0}, v11, 4, v10")
        e(f"s_mov_b32 s{sCONS}, 0")
        e(f"s_mov_b32 s{sREM}, 4")
        c = 192 ** -0.5 * math.log2(math.e)
        e(f"s_mov_b32 s{sC}, {f32hex(c)}")
        e(f"s_mov_b32 s{sNC}, {f32hex(-c)}")
        e(f"s_add_u32 s{sNXT}, s{sCUR}, {self.hstep}")
        e(f"s_add_u32 s{sNXT2}, s{sNXT}, 6144")
        e(f"s_mov_b32 s{sPRV}, s{sCUR}")
        e(f"s_mov_b32 s{sPRV2}, s{sCUR}")
        e("s_mov_b32 vcc_lo, 0x00ff00ff")
        e("s_mov_b32 vcc_hi, 0x00ff00ff")
        self.wait_for("T0", False)
        e("s_barrier")
        self.inpro = False

    def pipeline(self, items, depth, rpf, sides=None):
        e = self.e
        n = len(items)
        sides = sides or {}
        for j in range(min(depth, n)):
            for r in items[j][0](FB + 4 * (j % depth)):
                e(r)
        for j in range(n):
            issued = min(j + depth, n)
            e(f"s_waitcnt lgkmcnt({(issued - j - 1) * rpf})")
            e(items[j][1](FB + 4 * (j % depth)))
            if j + depth < n:
                for r in items[j + depth][0](FB + 4 * (j % depth)):
                    e(r)
            for s, tag in sides.get(j, []):
                if tag: self.vm(s, tag)
                else: e(s)

    def kstep(self, kt, sides=None):
        e = self.e
        e(f"v_add_u32 v{VC}, s{sCONS}, v{VA0}")
        for u in range(1, 4):
            e(f"v_xor_b32 v{VC+u}, {u<<5}, v{VC}")
        items = []
        for s in range(12):
            for st in range(2):
                D = S0 + 16 * (2 * kt + st)
                def rd(b, s=s, st=st):
                    return [f"ds_read_b128 v[{b}:{b+3}], v{VC+s%4} offset:{st*12288+128*(s//4)}"]
                def mf(b, s=s, D=D):
                    C = "0" if s == 0 else f"v[{D}:{D+15}]"
                    q = qfrag(s)
                    return f"v_mfma_f32_32x32x16_bf16 v[{D}:{D+15}], v[{b}:{b+3}], v[{q}:{q+3}], {C}"
                items.append((rd, mf))
        if self.a.nocompute:
            for j in sorted(sides or {}):
                for s, tag in sides[j]:
                    if tag: self.vm(s, tag)
                    else: e(s)
            return
        self.pipeline(items, self.a.pk, 1, sides)

    def vstep(self, vt, sides=None):
        e = self.e
        e(f"v_add_u32 v{VC}, s{sCONS}, v{VB0}")
        for u in range(1, 4):
            e(f"v_xor_b32 v{VC+u}, {u<<5}, v{VC}")
        items = []
        for ks in range(4):
            for t in range(6):
                D = otile(t)
                P = 8 * (2 * vt + ks // 2) + 4 * (ks % 2)
                def rd(b, ks=ks, t=t):
                    off = ks * 6144 + (t // 2) * 128
                    return [f"ds_read_b64_tr_b16 v[{b}:{b+1}], v{VC+2*(t%2)} offset:{off}",
                            f"ds_read_b64_tr_b16 v[{b+2}:{b+3}], v{VC+2*(t%2)+1} offset:{off+3072}"]
                def mf(b, ks=ks, D=D, P=P, vt=vt):
                    C = "0" if (vt == 0 and ks == 0) else f"v[{D}:{D+15}]"
                    return f"v_mfma_f32_32x32x16_bf16 v[{D}:{D+15}], v[{b}:{b+3}], v[{P}:{P+3}], {C}"
                items.append((rd, mf))
        if self.a.nocompute:
            for j in sorted(sides or {}):
                for s, tag in sides[j]:
                    if tag: self.vm(s, tag)
                    else: e(s)
            return
        self.pipeline(items, self.a.pv, 2, sides)

    def softmax_list(self):
        o = []
        e = o.append
        M = FB
        NEG = FB + 4
        SUM = FB + 5
        chains = [[], [], [], []]
        for idx in range(128):
            chains[(idx // 2) % 4].append(idx)
        for ch in range(4):
            e(f"v_max_f32 v{M+ch}, v{chains[ch][0]}, v{chains[ch][1]}")
        for k in range(1, 16):
            for ch in range(4):
                e(f"v_max3_f32 v{M+ch}, v{M+ch}, v{chains[ch][2*k]}, v{chains[ch][2*k+1]}")
        e(f"v_max3_f32 v{M}, v{M}, v{M+1}, v{M+2}")
        e(f"v_max_f32 v{M}, v{M}, v{M+3}")
        e(f"v_mov_b32 v{M+1}, v{M}")
        e("s_nop 1")
        e(f"v_permlane32_swap_b32 v{M}, v{M+1}")
        e(f"v_max_f32 v{M}, v{M}, v{M+1}")
        e(f"v_mul_f32 v{NEG}, s{sNC}, v{M}")
        def fma(i):
            e(f"v_fma_f32 v{2*i}, v{2*i}, s{sC}, v{NEG}")
            e(f"v_fma_f32 v{2*i+1}, v{2*i+1}, s{sC}, v{NEG}")
        def ex(i):
            e(f"v_exp_f32 v{2*i}, v{2*i}")
            e(f"v_exp_f32 v{2*i+1}, v{2*i+1}")
        def fin(i):
            if i == 0:
                e(f"v_mov_b32 v{SUM}, v0")
                e(f"v_mov_b32 v{SUM+1}, v1")
            else:
                e(f"v_add_f32 v{SUM}, v{SUM}, v{2*i}")
                e(f"v_add_f32 v{SUM+1}, v{SUM+1}, v{2*i+1}")
            e(f"v_cvt_pk_bf16_f32 v{i}, v{2*i}, v{2*i+1}")
        fma(0); fma(1); ex(0)
        for i in range(64):
            if i + 2 < 64: fma(i + 2)
            if i + 1 < 64: ex(i + 1)
            else: e("s_nop 0")
            fin(i)
        e(f"v_add_f32 v{SUM}, v{SUM}, v{SUM+1}")
        e(f"v_mov_b32 v{SUM+1}, v{SUM}")
        e("s_nop 1")
        e(f"v_permlane32_swap_b32 v{SUM}, v{SUM+1}")
        e(f"v_add_f32 v{SUM}, v{SUM}, v{SUM+1}")
        e(f"v_rcp_f32 v{INV}, v{SUM}")
        return o

    def ochunk_list(self, cc):
        o = []
        b = otile(2 * cc)
        for i in range(4):
            for k in range(8):
                o.append(f"v_mul_f32 v{b+8*i+k}, v{b+8*i+k}, v{INV}")
            for k in range(4):
                o.append(f"v_cvt_pk_bf16_f32 v{b+4*i+k}, v{b+8*i+2*k}, v{b+8*i+2*k+1}")
        o += self.transp([b, b + 4, b + 8, b + 12], b + 16)
        return o

    def spread(self, lst, extra, first=0):
        n, m = len(lst), len(extra)
        pos = {}
        for k in range(m):
            pos.setdefault(first + (k * (n - first)) // m, []).append(extra[k])
        for i, s in enumerate(lst):
            for x in pos.get(i, []):
                self.vm(*x)
            if not self.a.nocompute:
                self.e(s)

    def sync(self, t):
        e = self.e
        self.adv_cons()
        self.trace(TR0)
        self.wait_for(f"T{(t+1)%8}", t == 7)
        e("s_barrier")
        self.trace(TR1, True)
        L = self.a.look
        if t == 8 - L:
            self.c("from here on the loads belong to the next head: past the last head make them out of range")
            e(f"s_cmp_eq_u32 s{sREM}, 1")
            e(f"s_cselect_b32 s{SK+2}, 0, s{SK+2}")
        if t == 3:
            e(f"s_cmp_eq_u32 s{sREM}, 1")
            e(f"s_cselect_b32 s{SQ+2}, 0, s{SQ+2}")
        if t == 12 - L:
            e(f"s_cmp_eq_u32 s{sREM}, 1")
            e(f"s_cselect_b32 s{SV+2}, 0, s{SV+2}")
        pt = t + L
        if pt < 8:
            self.dma(pt, sCUR, f"T{pt}")
        else:
            self.dma(pt - 8, sNXT, f"T{pt-8}")

    def build(self):
        e, a = self.e, self.a
        lds = NS * TILE
        self.o.append(HEADER + f"; @launch grid=(256,1,1) block=(512,1,1) lds={lds}")
        self.o.append('.amdgcn_target "amdgcn-amd-amdhsa--gfx950"')
        self.o.append(".text")
        self.o.append(f".globl {NAME}_kernel")
        self.o.append(".p2align 8")
        self.o.append(f".type {NAME}_kernel,@function")
        self.lab(f"{NAME}_kernel")
        qd = [int(x) for x in a.qdist.split(",")]
        assert sum(qd) == 12 and len(qd) == 4
        self.pro_order = (["Q", 0] if a.qfirst else [0, "Q"]) + list(range(1, a.look))
        self.prologue()
        self.o.append(".p2align 6")
        self.lab("L_head")
        self.c("---- Q: wait, transpose")
        self.wait_for("Q", False)
        if not a.nocompute:
            for cc in range(3):
                for s in self.transp([qslot(x) for x in QLD[cc]], qslot(QTMP[cc])):
                    e(s)
        spos = [int(x) for x in a.spos.split(",")]
        for kt in range(4):
            self.c(f"---- K{kt}")
            sides = {}
            if kt < 3:
                for j in range(4):
                    sides.setdefault(spos[j], []).append(self.ostore(kt, j))
            self.kstep(kt, sides)
            self.sync(kt)
            if kt == 2:
                e(f"s_mov_b32 s{SO+2}, {0 if a.nostore else TENSOR_BYTES}")
        self.c("---- softmax")
        ql = [self.qload(k, sNXT, sNXT2) for k in range(12)]
        self.spread(self.softmax_list(), ql[:qd[0]])
        ql = ql[qd[0]:]
        for vt in range(4):
            self.c(f"---- V{vt}")
            sides = {}
            if vt < 3:
                n = qd[vt + 1]
                for k in range(n):
                    sides.setdefault(2 + (k * 20) // max(n, 1), []).append(ql[k])
                ql = ql[n:]
            self.vstep(vt, sides)
            self.sync(4 + vt)
        self.c("---- O: normalise, pack, transpose")
        if not a.nocompute:
            for cc in range(3):
                for s in self.ochunk_list(cc):
                    e(s)
        e(f"s_mov_b32 s{sPRV}, s{sCUR}")
        e(f"s_add_u32 s{sPRV2}, s{sCUR}, 6144")
        e(f"s_mov_b32 s{sCUR}, s{sNXT}")
        e(f"s_add_u32 s{sNXT}, s{sNXT}, {self.hstep}")
        e(f"s_add_u32 s{sNXT2}, s{sNXT}, 6144")
        e(f"s_sub_u32 s{sREM}, s{sREM}, 1")
        e(f"s_cmp_lg_u32 s{sREM}, 0")
        e("s_cbranch_scc1 L_head")
        self.c("---- last head's stores")
        for cc in range(3):
            for j in range(4):
                e(self.ostore(cc, j)[0])
        e("s_waitcnt vmcnt(0)")
        if a.stamp:
            e("s_memrealtime s[54:55]")
            e("s_memtime s[56:57]")
            e("s_getreg_b32 s58, hwreg(HW_REG_XCC_ID)")
            e("s_waitcnt lgkmcnt(0)")
            e(f"s_lshl_b32 s59, s2, 3")
            e(f"s_add_u32 s59, s59, s{sW}")
            e(f"s_lshl_b32 s59, s59, 5")
            e("s_mov_b32 s60, s48")
            e("s_and_b32 s61, s49, 0xffff")
            e("s_mov_b32 s62, 65536")
            e("s_mov_b32 s63, 0x20000")
            for k, r in enumerate((50, 51, 54, 55, 52, 56, 58, 2)):
                e(f"v_mov_b32 v{k}, s{r}")
            e("v_mov_b32 v8, 0")
            e("s_mov_b64 exec, 1")
            e("buffer_store_dwordx4 v[0:3], v8, s[60:63], s59 offen")
            e("buffer_store_dwordx4 v[4:7], v8, s[60:63], s59 offen offset:16")
            if a.trace:
                e("s_mov_b64 exec, -1")
                e("s_mov_b32 s62, 0x1000000")
                e("v_mbcnt_lo_u32_b32 v8, -1, 0")
                e("v_mbcnt_hi_u32_b32 v8, -1, v8")
                e("v_lshlrev_b32 v8, 2, v8")
                e("s_lshl_b32 s59, s59, 4")
                e("s_add_u32 s59, s59, 65536")
                e(f"buffer_store_dword v{TR0}, v8, s[60:63], s59 offen")
                e(f"buffer_store_dword v{TR1}, v8, s[60:63], s59 offen offset:256")
            e("s_waitcnt vmcnt(0)")
        self.lab("L_end")
        e("s_endpgm")
        self.resolve_waits()
        self.o.append(f""".section .rodata,"a"
.p2align 6
.amdhsa_kernel {NAME}_kernel
  .amdhsa_next_free_vgpr {NV}
  .amdhsa_next_free_sgpr 72
  .amdhsa_accum_offset {NV}
  .amdhsa_group_segment_fixed_size 0
  .amdhsa_kernarg_size 48
  .amdhsa_user_sgpr_count 2
  .amdhsa_user_sgpr_kernarg_segment_ptr 1
  .amdhsa_system_sgpr_workgroup_id_x 1
.end_amdhsa_kernel
""")
        return "\n".join(self.o)

    def resolve_waits(self):
        body, pro = self.ops, self.pro_ops
        for (idx, tag, pos, inpro, ppos) in self.waits:
            cands = []
            if inpro:
                seqs = [pro[:ppos]]
            else:
                seqs = [pro + body[:pos], body + body[:pos]]
            for seq in seqs:
                last = max(i for i, t in enumerate(seq) if t == tag)
                cands.append(len(seq) - 1 - last)
            n = min(cands)
            assert n <= 63
            self.o[idx] = f"    s_waitcnt vmcnt({n})"

if __name__ == "__main__":
    ap = argparse.ArgumentParser()
    ap.add_argument("-o", default=f"cdna_kernels/{NAME}.s")
    ap.add_argument("--ld", default="nt")
    ap.add_argument("--ldq", default=None)
    ap.add_argument("--st", default="")
    ap.add_argument("--look", type=int, default=6)
    ap.add_argument("--pk", type=int, default=4)
    ap.add_argument("--pv", type=int, default=4)
    ap.add_argument("--qdist", default="12,0,0,0")
    ap.add_argument("--spos", default="3,8,13,18")
    for k in ("nocompute", "nostore", "stamp", "noload", "trace", "qfirst"):
        ap.add_argument("--" + k, action="store_true")
    a = ap.parse_args()
    open(a.o, "w").write(G(a).build())
```

```python
import struct, math, sys, argparse

NAME = "standalone__mha_softmax__near_ridge"
HEAD_BYTES = 256 * 384
TENSOR_BYTES = 1024 * HEAD_BYTES
TILE = 64 * 384
NS = 6
NH = 4
DEPTH = 6
BARPOS = 20

def f32hex(x):
    return "0x%08x" % struct.unpack("<I", struct.pack("<f", x))[0]

HEADER = """; Kernarg layout for this problem (48 bytes, ptrs only, base s[0:1]):
"""

S0 = 0
QR = 128
XR = 180
FB = 212
TR0, TR1 = 236, 237
MX = 238
VD = 244
VA0 = 247
VB0 = 248
VC = 249
VQO = 253
INV = 254
NV = 256

SQ, SK, SV, SO = 12, 16, 20, 24
sW, sW3, sCUR, sNXT, sPROD, sCONS, sREM, sC, sNC, sT, sNXT2, sPRV, sPRV2, sPLIM = range(32, 46)

def otile(t):
    return 64 + 16 * t if t < 4 else XR + 16 * (t - 4)
def qslot(n):
    return QR + 4 * n
QLD = [[1 + 4 * cc + j for j in range(4)] for cc in range(3)]
QTMP = [0, 3, 7]
QFIN = [[QTMP[cc], QLD[cc][1], QLD[cc][0], QLD[cc][3]] for cc in range(3)]
def qfrag(s):
    return qslot(QFIN[s // 4][s % 4])

def cost(s):
    return 2 if s.startswith("v_exp") or s.startswith("v_rcp") else 1

class Path:
    def __init__(self):
        self.pro, self.body, self.waits, self.inpro = [], [], [], True

class G:
    def __init__(self, a):
        self.a = a
        fl = lambda s: "".join(" " + x for x in s.split(",") if x)
        self.ld, self.st, self.ldq = fl(a.ld), fl(a.st), fl(a.ldq if a.ldq is not None else a.ld)
        self.o = []
        self.nlab = 0
        self.common = []
        self.p = None
    def e(self, s):
        self.o.append("    " + s)
    def lab(self, s):
        self.o.append(s + ":")
    def c(self, s):
        self.o.append("    ; " + s)
    def vm(self, s, tag):
        if self.a.win and not self.p.inpro:
            self.e(f"s_waitcnt vmcnt({self.a.win - 1})")
        self.e(s)
        (self.p.pro if self.p.inpro else self.p.body).append(tag)
    def emit(self, x):
        if isinstance(x, tuple): self.vm(*x)
        else: self.e(x)
    def wait_for(self, tag):
        self.o.append(None)
        p = self.p
        p.waits.append((len(self.o) - 1, tag, p.inpro, len(p.pro) if p.inpro else len(p.body)))

    def trace(self, vreg, inc=False):
        if self.a.rtrace and inc:
            self.a.htrace = True; self.htrace(); self.a.htrace = False
        if not self.a.trace:
            return
        e = self.e
        e("s_memtime s[64:65]")
        e("s_mov_b32 m0, s66")
        e("s_waitcnt lgkmcnt(0)")
        e(f"v_writelane_b32 v{vreg}, s64, m0")
        if inc:
            e("s_add_u32 s66, s66, 1")

    def htrace(self):
        if not self.a.htrace:
            return
        e = self.e
        e("s_memrealtime s[64:65]")
        e("s_memtime s[68:69]")
        e("s_mov_b32 m0, s66")
        e("s_waitcnt lgkmcnt(0)")
        e(f"v_writelane_b32 v{TR0}, s64, m0")
        e(f"v_writelane_b32 v{TR1}, s68, m0")
        e("s_add_u32 s66, s66, 1")

    def dma_list(self, t, rel, hd):
        srd = SK if t < 4 else SV
        headreg = sNXT if rel else sCUR
        off = (t % 4) * TILE
        o = []
        if rel:
            o += [f"s_cmp_eq_u32 s{sREM}, 1", f"s_cselect_b32 s{srd+2}, 0, s{srd+2}"]
        o.append(f"s_mov_b32 m0, s{sPROD}")
        if off:
            o.append(f"s_add_u32 s{sT}, s{headreg}, {off}")
            so = sT
        else:
            o.append("s_nop 0")
            so = headreg
        for i in range(3):
            of = f" offset:{1024*i}" if i else ""
            o.append((f"buffer_load_dwordx4 v{VD+i}, s[{srd}:{srd+3}], s{so} offen{of}{self.ld} lds", ("T", t, hd)))
        o += [f"s_add_u32 s{sPROD}, s{sPROD}, {TILE}",
              f"s_cmp_eq_u32 s{sPROD}, s{sPLIM}",
              f"s_cselect_b32 s{sPROD}, s{sW3}, s{sPROD}"]
        return o
    def qload(self, k, h0, h1, hd):
        cc, j = k // 4, k % 4
        r = qslot(QLD[cc][j])
        so = h1 if j >= 2 else h0
        off = (j & 1) * 3072 + 128 * cc
        o = f" offset:{off}" if off else ""
        return (f"buffer_load_dwordx4 v[{r}:{r+3}], v{VQO}, s[{SQ}:{SQ+3}], s{so} offen{o}{self.ldq}", ("Q", cc, hd))
    def oregs(self, cc):
        b = otile(2 * cc)
        return [b + 16, b + 4, b + 0, b + 12]
    def ostore(self, cc, j):
        r = self.oregs(cc)[j]
        so = sPRV2 if j >= 2 else sPRV
        off = (j & 1) * 3072 + 128 * cc
        o = f" offset:{off}" if off else ""
        return (f"buffer_store_dwordx4 v[{r}:{r+3}], v{VQO}, s[{SO}:{SO+3}], s{so} offen{o}{self.st}", ("O", cc, -1))

    def transp(self, L, T):
        out = []
        for (a, b, d) in ((L[0], L[1], T), (L[2], L[3], L[0])):
            for k in range(4):
                out.append(f"v_cndmask_b32_dpp v{d+k}, v{b+k}, v{a+k}, vcc row_ror:8 row_mask:0xf bank_mask:0xf")
            for k in range(4):
                out.append(f"v_mov_b32_dpp v{b+k}, v{a+k} row_ror:8 row_mask:0xf bank_mask:0x3")
        F = [T, L[1], L[0], L[3]]
        for (a, b) in ((F[0], F[2]), (F[1], F[3])):
            for k in range(4):
                out.append(f"v_permlane16_swap_b32 v{a+k}, v{b+k}")
        return out

    def adv_cons(self):
        e = self.e
        e(f"s_add_u32 s{sCONS}, s{sCONS}, {TILE}")
        e(f"s_cmp_eq_u32 s{sCONS}, {NS*TILE}")
        e(f"s_cselect_b32 s{sCONS}, 0, s{sCONS}")

    def prologue(self):
        e, a = self.e, self.a
        e("s_cmp_ge_u32 s2, 256")
        e("s_cbranch_scc1 L_end")
        if a.stamp:
            e("s_memrealtime s[50:51]")
            e("s_memtime s[52:53]")
            e("s_load_dwordx2 s[48:49], s[0:1], 40")
            e("s_mov_b32 s66, 0")
        e("s_load_dwordx8 s[4:11], s[0:1], 0")
        e("v_and_b32 v1, 63, v0                 ; lane")
        e("v_lshrrev_b32 v2, 6, v0              ; wave")
        e("v_lshrrev_b32 v3, 3, v1              ; lane/8")
        e(f"v_readfirstlane_b32 s{sW}, v2")
        e("v_and_b32 v4, 7, v1                  ; lane%8")
        e("v_and_b32 v5, 1, v2")
        e("v_lshlrev_b32 v5, 1, v5              ; (w&1)<<1")
        e("v_mul_u32_u24 v6, 3072, v2           ; w*3072")
        e("v_lshl_add_u32 v6, v3, 7, v6         ; + (lane/8)*128")
        for i in range(3):
            e(f"v_add_u32 v7, {8*i}, v3")
            e("v_mul_u32_u24 v7, 11, v7")
            e("v_lshrrev_b32 v7, 5, v7")
            e("v_bfe_u32 v8, v7, 1, 1")
            e("v_lshlrev_b32 v8, 2, v8")
            e("v_bfe_u32 v9, v7, 2, 1")
            e("v_or3_b32 v8, v8, v9, v5             ; f(row)")
            e("v_xor_b32 v8, v8, v4")
            e(f"v_lshl_add_u32 v{VD+i}, v8, 4, v6")
        e("v_lshrrev_b32 v8, 5, v1              ; h")
        e("v_lshl_add_u32 v11, v2, 5, v4")
        e("v_mul_u32_u24 v11, 384, v11")
        e("v_and_b32 v12, 3, v3")
        e("v_lshl_add_u32 v11, v12, 5, v11")
        e(f"v_lshl_add_u32 v{VQO}, v8, 4, v11   ; (32w + lane%8)*384 + 32*((lane>>3)&3) + 16h")
        e(f"s_mul_i32 s{sW3}, s{sW}, 3072")
        e(f"s_mov_b32 s{sPROD}, s{sW3}")
        e(f"s_add_u32 s{sPLIM}, s{sW3}, {NS*TILE}")
        if a.xor:
            e(f"s_xor_b32 s2, s2, {a.xor}")
        e(f"s_mul_i32 s{sCUR}, s2, {HEAD_BYTES * a.hmul}")
        self.hstep = a.hstep * HEAD_BYTES
        e("s_waitcnt lgkmcnt(0)")
        for srd, p, n in ((SQ, 4, TENSOR_BYTES), (SK, 6, TENSOR_BYTES), (SV, 8, TENSOR_BYTES), (SO, 10, 0)):
            if a.noload and srd != SO:
                n = 0
            e(f"s_mov_b32 s{srd}, s{p}")
            e(f"s_and_b32 s{srd+1}, s{p+1}, 0xffff")
            e(f"s_mov_b32 s{srd+2}, {n}")
            e(f"s_mov_b32 s{srd+3}, 0x20000")

    def setup2(self):
        e = self.e
        e("v_and_b32 v7, 31, v1                 ; m")
        e("v_bfe_u32 v9, v7, 1, 1")
        e("v_lshlrev_b32 v9, 2, v9")
        e("v_bfe_u32 v10, v7, 2, 2")
        e("v_or_b32 v9, v9, v10                 ; f(m)")
        e("v_xor_b32 v9, v9, v8                 ; f(m)^h")
        e("v_mul_u32_u24 v10, 384, v7           ; m*384")
        e(f"v_lshl_add_u32 v{VA0}, v9, 4, v10")
        e("v_bfe_u32 v9, v1, 2, 2               ; r")
        e("v_lshl_add_u32 v10, v8, 2, v9        ; 4h+r")
        e("v_mul_u32_u24 v10, 384, v10")
        e("v_bfe_u32 v11, v1, 1, 1              ; cc>>1")
        e("v_lshl_add_u32 v10, v11, 3, v10      ; base")
        e("v_bfe_u32 v11, v1, 3, 1              ; r>>1")
        e("v_lshlrev_b32 v11, 2, v11")
        e("v_bfe_u32 v12, v1, 4, 1              ; up")
        e("v_lshlrev_b32 v12, 1, v12")
        e("v_and_b32 v13, 1, v1")
        e("v_xor_b32 v13, v13, v8               ; (cc&1)^h")
        e("v_or3_b32 v11, v11, v12, v13         ; x")
        e(f"v_lshl_add_u32 v{VB0}, v11, 4, v10")
        e(f"s_mov_b32 s{sCONS}, 0")
        e(f"s_mov_b32 s{sREM}, {NH}")
        c = 192 ** -0.5 * math.log2(math.e)
        e(f"s_mov_b32 s{sC}, {f32hex(c)}")
        e(f"s_mov_b32 s{sNC}, {f32hex(-c)}")
        e(f"s_add_u32 s{sNXT}, s{sCUR}, {self.hstep}")
        e(f"s_add_u32 s{sNXT2}, s{sNXT}, 6144")
        e(f"s_mov_b32 s{sPRV}, s{sCUR}")
        e(f"s_mov_b32 s{sPRV2}, s{sCUR}")
        e("s_mov_b32 vcc_lo, 0x00ff00ff")
        e("s_mov_b32 vcc_hi, 0x00ff00ff")

    def addr_calc(self, kind):
        base = VA0 if kind == "K" else VB0
        o = [f"v_add_u32 v{VC}, s{sCONS}, v{base}"]
        o += [f"v_xor_b32 v{VC+u}, {u<<5}, v{VC}" for u in range(1, 4)]
        o += [f"s_add_u32 s{sCONS}, s{sCONS}, {TILE}",
              f"s_cmp_eq_u32 s{sCONS}, {NS*TILE}",
              f"s_cselect_b32 s{sCONS}, 0, s{sCONS}"]
        return o
    def item_reads(self, kind, j):
        b = FB + 4 * (j % DEPTH)
        jj = j % 24
        if kind == "K":
            s, st = jj // 2, jj % 2
            return [f"ds_read_b128 v[{b}:{b+3}], v{VC+s%4} offset:{st*12288+128*(s//4)}"]
        ks, t = jj // 6, jj % 6
        off = ks * 6144 + (t // 2) * 128
        return [f"ds_read_b64_tr_b16 v[{b}:{b+1}], v{VC+2*(t%2)} offset:{off}",
                f"ds_read_b64_tr_b16 v[{b+2}:{b+3}], v{VC+2*(t%2)+1} offset:{off+3072}"]
    def item_mfma(self, kind, j):
        b = FB + 4 * (j % DEPTH)
        tl, jj = j // 24, j % 24
        if kind == "K":
            s, st = jj // 2, jj % 2
            D = S0 + 16 * (2 * tl + st)
            C = "0" if s == 0 else f"v[{D}:{D+15}]"
            q = qfrag(s)
            return f"v_mfma_f32_32x32x16_bf16 v[{D}:{D+15}], v[{b}:{b+3}], v[{q}:{q+3}], {C}"
        ks, t = jj // 6, jj % 6
        D = otile(t)
        P = 8 * (2 * tl + ks // 2) + 4 * (ks % 2)
        C = "0" if (tl == 0 and ks == 0) else f"v[{D}:{D+15}]"
        return f"v_mfma_f32_32x32x16_bf16 v[{D}:{D+15}], v[{b}:{b+3}], v[{P}:{P+3}], {C}"

    def plain(self, x):
        if isinstance(x, tuple):
            if x[0] == "WAIT": self.wait_for(x[1])
            elif x[0] == "LABEL": self.lab(x[1])
            else: self.vm(*x)
        elif self.a.nocompute and x.startswith(("v_", "ds_")):
            pass
        else:
            self.e(x)

    def preread(self, kind):
        for x in self.addr_calc(kind): self.plain(x)
        for j in range(DEPTH):
            for r in self.item_reads(kind, j): self.plain(r)

    def mblock(self, kind, sides, barrier):
        rpf = 1 if kind == "K" else 2
        pend = list(range(DEPTH))
        def req(j):
            for r in self.item_reads(kind, j): self.plain(r)
            pend.append(j)
        for j in range(96):
            tl, jj = j // 24, j % 24
            if j in pend:
                k = pend.index(j)
                if not self.a.nocompute:
                    self.e(f"s_waitcnt lgkmcnt({(len(pend) - k - 1) * rpf})")
                del pend[:k + 1]
            self.plain(self.item_mfma(kind, j))
            if jj + DEPTH < 24:
                req(j + DEPTH)
            elif jj == 24 - DEPTH and tl < 3:
                for x in self.addr_calc(kind): self.plain(x)
            if jj == BARPOS:
                barrier(tl)
                pend.clear()
                if tl < 3:
                    for k in range(BARPOS + DEPTH - 23): req(24 * (tl + 1) + k)
            elif jj > BARPOS and tl < 3:
                req(j + DEPTH)
            for x in sides.get(j, []):
                self.plain(x)

    def max_list(self, tiles, first):
        o = []
        vals = [16 * t + i for t in tiles for i in range(16)]
        k = 0
        if first:
            o.append(f"v_max_f32 v{MX}, v{vals[0]}, v{vals[1]}")
            o.append(f"v_max_f32 v{MX+1}, v{vals[2]}, v{vals[3]}")
            k = 4
        ch = 0
        while k < len(vals):
            o.append(f"v_max3_f32 v{MX+ch}, v{MX+ch}, v{vals[k]}, v{vals[k+1]}")
            ch ^= 1
            k += 2
        return o

    def softmax_list(self, maxdone):
        a = self.a
        o = []
        e = o.append
        M, NEG, SUM = MX, MX + 2, MX + 4
        o += self.max_list(list(range(maxdone, 8)), maxdone == 0)
        e(f"v_max_f32 v{M}, v{M}, v{M+1}")
        e(f"v_mov_b32 v{M+1}, v{M}")
        e("s_nop 1")
        e(f"v_permlane32_swap_b32 v{M}, v{M+1}")
        e(f"v_max_f32 v{M}, v{M}, v{M+1}")
        e(f"v_mul_f32 v{NEG}, s{sNC}, v{M}")
        if a.pkfma:
            e(f"v_mov_b32 v{NEG+1}, s{sC}")
        def fma(i):
            if a.pkfma:
                e(f"v_pk_fma_f32 v[{2*i}:{2*i+1}], v[{2*i}:{2*i+1}], v[{NEG}:{NEG+1}], v[{NEG}:{NEG+1}] op_sel:[0,1,0] op_sel_hi:[1,1,0]")
            else:
                e(f"v_fma_f32 v{2*i}, v{2*i}, s{sC}, v{NEG}")
                e(f"v_fma_f32 v{2*i+1}, v{2*i+1}, s{sC}, v{NEG}")
        def ex(i):
            e(f"v_exp_f32 v{2*i}, v{2*i}")
            e(f"v_exp_f32 v{2*i+1}, v{2*i+1}")
        def fin(i):
            if i == 0:
                e(f"v_mov_b32 v{SUM}, v0")
                e(f"v_mov_b32 v{SUM+1}, v1")
            elif a.pkadd:
                e(f"v_pk_add_f32 v[{SUM}:{SUM+1}], v[{SUM}:{SUM+1}], v[{2*i}:{2*i+1}]")
            else:
                e(f"v_add_f32 v{SUM}, v{SUM}, v{2*i}")
                e(f"v_add_f32 v{SUM+1}, v{SUM+1}, v{2*i+1}")
            e(f"v_cvt_pk_bf16_f32 v{i}, v{2*i}, v{2*i+1}")
        fma(0); fma(1); ex(0)
        for i in range(64):
            if i + 2 < 64: fma(i + 2)
            if i + 1 < 64: ex(i + 1)
            else: e("s_nop 0")
            fin(i)
        e(f"v_add_f32 v{SUM}, v{SUM}, v{SUM+1}")
        e(f"v_mov_b32 v{SUM+1}, v{SUM}")
        e("s_nop 1")
        e(f"v_permlane32_swap_b32 v{SUM}, v{SUM+1}")
        e(f"v_add_f32 v{SUM}, v{SUM}, v{SUM+1}")
        e(f"v_rcp_f32 v{INV}, v{SUM}")
        return o

    def ochunk_list(self, cc):
        o = []
        b = otile(2 * cc)
        for i in range(4):
            if self.a.pkmul:
                for k in range(4):
                    r = b + 8 * i + 2 * k
                    o.append(f"v_pk_mul_f32 v[{r}:{r+1}], v[{r}:{r+1}], v[{INV}:{INV+1}] op_sel_hi:[1,0]")
            else:
                for k in range(8):
                    o.append(f"v_mul_f32 v{b+8*i+k}, v{b+8*i+k}, v{INV}")
            for k in range(4):
                o.append(f"v_cvt_pk_bf16_f32 v{b+4*i+k}, v{b+8*i+2*k}, v{b+8*i+2*k+1}")
        o += self.transp([b, b + 4, b + 8, b + 12], b + 16)
        return o
    def qt_list(self, cc):
        return self.transp([qslot(x) for x in QLD[cc]], qslot(QTMP[cc]))

    def vblock(self, lst, nparts, groups, barrier, nxt, tail):
        n = len(lst)
        cs = [0]
        for s in lst: cs.append(cs[-1] + (cost(s) if isinstance(s, str) else 0))
        lastpos = max(n - tail, 0)
        tot = cs[lastpos]
        cuts = []
        for p in range(1, nparts):
            cuts.append(min(i for i in range(n + 1) if cs[i] >= tot * p / nparts))
        cuts.append(lastpos)
        lo = 0
        ins = {}
        for p, hi in enumerate(cuts):
            g = groups[p]
            for k, grp in enumerate(g):
                ins.setdefault(lo + (k * (hi - lo)) // len(g), []).extend(grp)
            lo = hi
        for i in range(n + 1):
            if i in cuts:
                for p, cpos in enumerate(cuts):
                    if cpos == i:
                        barrier(p)
                        if p == nparts - 1: self.preread(nxt)
            for x in ins.get(i, []): self.plain(x)
            if i < n: self.plain(lst[i])

    def group(self, name, lag):
        e, a = self.e, self.a
        phases = self.phases
        n = len(phases)
        p = self.p
        def dma_groups(g, pro):
            out = []
            for (t, ha) in self.issue.get(g % n, []):
                if pro:
                    out.append(self.dma_list(t, 0, 0)); assert ha == 0
                else:
                    rel = ha + (1 if g >= n else 0)
                    assert rel in (0, 1), (name, g, t, ha)
                    d = self.dma_list(t, rel, rel)
                    if g > n:
                        self.nlab += 1
                        d = [d[0], f"s_cbranch_scc1 L_nd{self.nlab}"] + d[2:] + [("LABEL", f"L_nd{self.nlab}")]
                    out.append(d)
            return out
        def end_interval(g, pro):
            self.trace(TR0)
            for (t, ha) in self.cert.get(g % n, []):
                self.wait_for(("T", t, ha if pro else ha + (1 if g >= n else 0)))
            e("s_waitcnt lgkmcnt(0)")
            if not pro and g >= n:
                self.nlab += 1
                e(f"s_cmp_eq_u32 s{sREM}, 1")
                e(f"s_cbranch_scc1 L_nb{self.nlab}")
                e("s_barrier")
                self.lab(f"L_nb{self.nlab}")
            else:
                e("s_barrier")
            self.trace(TR1, True)
        order = {"A": [0, "Q"] + self.pro_tiles[1:], "B": self.pro_tiles + ["Q"]}[name]
        for step in order:
            if step == "Q":
                e(f"s_add_u32 s{sT}, s{sCUR}, 6144")
                for k in range(12):
                    self.vm(*self.qload(k, sCUR, sT, 0))
            else:
                for x in self.dma_list(step, 0, 0): self.emit(x)
        self.setup2()
        self.wait_for(("T", 0, 0))
        e("s_barrier")
        for g in range(lag):
            for grp in dma_groups(g, True):
                for x in grp: self.emit(x)
            end_interval(g, True)
        self.preread("K")
        for cc in range(3):
            self.wait_for(("Q", cc, 0))
            for s in self.qt_list(cc): self.plain(s)
        p.inpro = False
        self.o.append(".p2align 6")
        self.lab(f"L_head{name}{self.sfx}")
        self.htrace()
        place = dict(x.split(":") for x in (a.placeA if name == "A" else a.placeB).split(","))
        qdist = dict(zip(phases, [int(x) for x in (a.qdistA if name == "A" else a.qdistB).split(",")]))
        assert sum(qdist.values()) == 12
        ql = [self.qload(k, sNXT, sNXT2, 1) for k in range(12)]
        qpre = [f"s_cmp_eq_u32 s{sREM}, 1", f"s_cselect_b32 s{SQ+2}, 0, s{SQ+2}"]
        units = {}
        for cc in range(3):
            units[f"O{cc}"] = self.ochunk_list(cc)
            units[f"T{cc}"] = [("WAIT", ("Q", cc, 1))] + self.qt_list(cc)
        mem, val = {}, {}
        for pi, ph in enumerate(phases):
            g = dma_groups(pi + lag, False)
            for k in range(qdist[ph]):
                g.append((qpre if len(ql) == 12 else []) + [ql.pop(0)])
            for cc in range(3):
                if place[f"W{cc}"] == ph:
                    g += [[self.ostore(cc, j)] for j in range(4)]
            mem[ph] = g
            v = []
            for u in ("O0", "O1", "O2", "T0", "T1", "T2"):
                if place[u] == ph: v += units[u]
            val[ph] = v
        def msides(kind):
            sides = {}
            for tl in range(4):
                ph = f"{kind}{tl}"
                lo, hi = (24 * tl - 2 if tl else 0), 24 * tl + BARPOS - 1
                v = list(val[ph])
                if kind == "K" and a.maxk and tl >= 1:
                    v = v + self.max_list([2 * tl - 2, 2 * tl - 1], tl == 1)
                vlo = 24 * tl + 5 if (kind == "K" and a.maxk and tl >= 1 and not val[ph]) else lo
                for k, s in enumerate(v):
                    sides.setdefault(vlo + (k * (hi - vlo + 1)) // len(v), []).append(s)
                g = mem[ph]
                late = any(place[f"W{cc}"] == ph and place[f"O{cc}"] == ph for cc in range(3))
                assert not late
                for k, grp in enumerate(g):
                    sides.setdefault(lo + (k * (hi - lo + 1)) // len(g), []).extend(grp)
            return sides
        idx = {ph: i for i, ph in enumerate(phases)}
        nsm = sum(1 for x in phases if x[0] == "S")
        self.c(f"---- {name}: K block")
        if a.prio: e(f"s_setprio {a.prio}")
        self.mblock("K", msides("K"), lambda t: end_interval(idx[f"K{t}"] + lag, False))
        e(f"s_mov_b32 s{SO+2}, {0 if a.nostore else TENSOR_BYTES}")
        self.c(f"---- {name}: softmax")
        if a.prio: e("s_setprio 0")
        e("s_nop 7")
        e("s_nop 2")
        self.vblock(self.softmax_list(6 if a.maxk else 0), nsm, [mem[f"S{i}"] for i in range(nsm)],
                    lambda i: end_interval(idx[f"S{i}"] + lag, False), "V", a.tail)
        self.c(f"---- {name}: V block")
        self.htrace()
        if a.prio: e(f"s_setprio {a.prio}")
        self.mblock("V", msides("V"), lambda t: end_interval(idx[f"V{t}"] + lag, False))
        self.c(f"---- {name}: E")
        if a.prio: e("s_setprio 0")
        e(f"s_mov_b32 s{sPRV}, s{sCUR}")
        e(f"s_add_u32 s{sPRV2}, s{sCUR}, 6144")
        e("s_nop 3")
        self.vblock(val["E0"], 1, [mem["E0"]], lambda i: end_interval(idx["E0"] + lag, False), "K", a.tail)
        e(f"s_mov_b32 s{sCUR}, s{sNXT}")
        e(f"s_add_u32 s{sNXT}, s{sNXT}, {self.hstep}")
        e(f"s_add_u32 s{sNXT2}, s{sNXT}, 6144")
        e(f"s_sub_u32 s{sREM}, s{sREM}, 1")
        e(f"s_cmp_lg_u32 s{sREM}, 0")
        e(f"s_cbranch_scc1 L_head{name}{self.sfx}")
        self.c("---- last head: what the next head's K block would have done")
        for cc in range(3):
            if place[f"O{cc}"] != "E0":
                for x in units[f"O{cc}"]: self.plain(x)
            for j in range(4):
                e(self.ostore(cc, j)[0])

    def check_schedule(self):
        n, lag = len(self.phases), self.a.lag
        rd = {int(ph[1]) + (4 if ph[0] == "V" else 0): i for i, ph in enumerate(self.phases) if ph[0] in "KV"}
        iss, cer = {}, {}
        for h in range(-1, 4):
            for g in range(n):
                for (t, ha) in self.issue.get(g, []): iss[8 * (h + ha) + t] = n * h + g
                for (t, ha) in self.cert.get(g, []): cer[8 * (h + ha) + t] = n * h + g
        order = sorted(iss, key=lambda x: (iss[x], x))
        assert order == sorted(order), "issue order must be stream order"
        for x in range(8, 24):
            h, t = divmod(x, 8)
            ra = n * h + rd[t]
            assert cer[x] < ra, ("cert", x)
            assert iss[x] <= cer[x], ("iss/cert", x)
            ho, to = divmod(x - NS, 8)
            assert iss[x] > n * ho + rd[to] + lag, ("slot", x, iss[x], n * ho + rd[to] + lag)
        self.pro_tiles = [t for t in range(8) if iss[t] < 0]
        assert self.pro_tiles == list(range(len(self.pro_tiles)))
        for t in range(1, 8):
            assert cer[t] >= 0, ("first-head cert", t)

    def schedule(self):
        a = self.a
        self.phases = a.phases.split(",")
        n = len(self.phases)
        rd = {int(ph[1]) + (4 if ph[0] == "V" else 0): i for i, ph in enumerate(self.phases) if ph[0] in "KV"}
        dist = [int(x) for x in a.dist.split(",")]
        self.issue, self.cert = {}, {}
        for t in range(8):
            g = rd[t] - dist[t]
            self.issue.setdefault(g % n, []).append((t, 1 if g < 0 else 0))
            g = rd[t] - 1
            self.cert.setdefault(g % n, []).append((t, 1 if g < 0 else 0))
        for g in self.issue: self.issue[g].sort(key=lambda x: (x[1], x[0]))
        self.check_schedule()

    def build(self, odd=None):
        e, a = self.e, self.a
        lds = NS * TILE
        self.o.append(HEADER + f"; @launch grid=(256,1,1) block=(512,1,1) lds={lds}")
        self.o.append('.amdgcn_target "amdgcn-amd-amdhsa--gfx950"')
        self.o.append(".text")
        self.o.append(f".globl {NAME}_kernel")
        self.o.append(".p2align 8")
        self.o.append(f".type {NAME}_kernel,@function")
        self.lab(f"{NAME}_kernel")
        self.p = Path()
        self.prologue()
        common = list(self.p.pro)
        paths = []
        variants = [("", a)] + ([("o", odd)] if odd else [])
        if odd:
            e(f"s_getreg_b32 s{sT}, hwreg(HW_REG_XCC_ID)")
            e(f"s_bitcmp1_b32 s{sT}, 0")
            e("s_cbranch_scc1 L_varo")
        for sfx, va in variants:
            self.a = va
            self.schedule()
            if sfx: self.lab("L_var" + sfx)
            e(f"s_cmp_ge_u32 s{sW}, 4")
            e(f"s_cbranch_scc1 L_grpB{sfx}")
            for name, lag in (("A", 0), ("B", va.lag)):
                if name == "B": self.lab("L_grpB" + sfx)
                self.p = Path(); self.p.pro = list(common)
                self.sfx = sfx
                self.group(name, lag)
                paths.append(self.p)
                if not (name == "B" and va is variants[-1][1]): e("s_branch L_fin")
        self.a = a
        self.lab("L_fin")
        if a.stamp:
            e("s_waitcnt vmcnt(0)")
            e("s_memrealtime s[54:55]")
            e("s_memtime s[56:57]")
            e("s_getreg_b32 s58, hwreg(HW_REG_XCC_ID)")
            e("s_getreg_b32 s67, hwreg(HW_REG_HW_ID)")
            e("s_waitcnt lgkmcnt(0)")
            e(f"s_lshl_b32 s59, s2, 3")
            e(f"s_add_u32 s59, s59, s{sW}")
            e(f"s_lshl_b32 s59, s59, 5")
            e("s_mov_b32 s60, s48")
            e("s_and_b32 s61, s49, 0xffff")
            e("s_mov_b32 s62, 65536")
            e("s_mov_b32 s63, 0x20000")
            for k, r in enumerate((50, 51, 54, 55, 52, 56, 58, 67)):
                e(f"v_mov_b32 v{k}, s{r}")
            e("v_mov_b32 v8, 0")
            e("s_mov_b64 exec, 1")
            e("buffer_store_dwordx4 v[0:3], v8, s[60:63], s59 offen")
            e("buffer_store_dwordx4 v[4:7], v8, s[60:63], s59 offen offset:16")
            if a.trace or a.htrace or a.rtrace:
                e("s_mov_b64 exec, -1")
                e("s_mov_b32 s62, 0x1000000")
                e("v_mbcnt_lo_u32_b32 v8, -1, 0")
                e("v_mbcnt_hi_u32_b32 v8, -1, v8")
                e("v_lshlrev_b32 v8, 2, v8")
                e("s_lshl_b32 s59, s59, 4")
                e("s_add_u32 s59, s59, 65536")
                e(f"buffer_store_dword v{TR0}, v8, s[60:63], s59 offen")
                e(f"buffer_store_dword v{TR1}, v8, s[60:63], s59 offen offset:256")
        e("s_waitcnt vmcnt(0)")
        self.lab("L_end")
        e("s_endpgm")
        for p in paths: self.resolve_waits(p)
        self.o.append(f""".section .rodata,"a"
.p2align 6
.amdhsa_kernel {NAME}_kernel
  .amdhsa_next_free_vgpr {NV}
  .amdhsa_next_free_sgpr 72
  .amdhsa_accum_offset {NV}
  .amdhsa_group_segment_fixed_size 0
  .amdhsa_kernarg_size 48
  .amdhsa_user_sgpr_count 2
  .amdhsa_user_sgpr_kernarg_segment_ptr 1
  .amdhsa_system_sgpr_workgroup_id_x 1
.end_amdhsa_kernel
""")
        return "\n".join(self.o)

    def resolve_waits(self, p):
        for (idx, tag, inpro, pos) in p.waits:
            c = []
            if inpro:
                seq = p.pro[:pos]
                last = max(i for i, t in enumerate(seq) if t == tag)
                c.append(len(seq) - 1 - last)
            else:
                for it in range(NH):
                    seq = list(p.pro)
                    for j in range(it + 1):
                        b = p.body if j < it else p.body[:pos]
                        seq += [(k, x, h + j) for (k, x, h) in b]
                    want = (tag[0], tag[1], tag[2] + it)
                    last = max(i for i, t in enumerate(seq) if t == want)
                    c.append(len(seq) - 1 - last)
            nn = min(c)
            assert nn <= 63
            self.o[idx] = f"    s_waitcnt vmcnt({nn})"

if __name__ == "__main__":
    ap = argparse.ArgumentParser()
    ap.add_argument("-o", default=f"cdna_kernels/{NAME}.s")
    ap.add_argument("--ld", default="nt")
    ap.add_argument("--ldq", default=None)
    ap.add_argument("--st", default="")
    ap.add_argument("--win", type=int, default=0)
    ap.add_argument("--xor", type=int, default=0)
    ap.add_argument("--hmul", type=int, default=1)
    ap.add_argument("--hstep", type=int, default=256)
    ap.add_argument("--lag", type=int, default=4)
    ap.add_argument("--prio", type=int, default=0)
    ap.add_argument("--tail", type=int, default=24)
    ap.add_argument("--phases", default="K0,K1,K2,K3,S0,S1,S2,S3,V0,V1,V2,V3,E0")
    ap.add_argument("--dist", default="6,6,2,2,6,6,5,5")
    ap.add_argument("--qdistA", default="0,0,0,0,0,0,0,3,3,3,3,0,0")
    ap.add_argument("--qdistB", default="0,0,0,0,0,3,3,3,3,0,0,0,0")
    ap.add_argument("--placeA", default="O0:E0,O1:K0,O2:K1,T0:E0,T1:E0,T2:E0,W0:K0,W1:K1,W2:K2")
    ap.add_argument("--placeB", default="O0:E0,O1:E0,O2:K0,T0:V2,T1:V3,T2:V3,W0:K0,W1:K1,W2:K2")
    for k in ("nocompute", "nostore", "stamp", "noload", "trace", "htrace", "rtrace", "pkfma", "pkadd", "pkmul", "maxk"):
        ap.add_argument("--" + k, action="store_true")
    ap.add_argument("--odd", default=None)
    a = ap.parse_args()
    odd = None
    if a.odd is not None:
        odd = ap.parse_args(sys.argv[1:] + a.odd.split())
    open(a.o, "w").write(G(a).build(odd))
```

```python
import struct, math, sys, argparse

NAME = "standalone__mha_softmax__near_ridge"
HEAD_BYTES = 256 * 384
TENSOR_BYTES = 1024 * HEAD_BYTES
TILE = 64 * 384
NS = 6
NH = 4
DEPTH = 6
BARPOS = 20

def f32hex(x):
    return "0x%08x" % struct.unpack("<I", struct.pack("<f", x))[0]

HEADER = """; Kernarg layout for this problem (48 bytes, ptrs only, base s[0:1]):
"""

S0 = 0
QR = 128
XR = 180
FB = 212
TR0, TR1 = 236, 237
MX = 238
VD = 244
VA0 = 247
VB0 = 248
VC = 249
VQO = 253
INV = 254
NV = 256

SQ, SK, SV, SO = 12, 16, 20, 24
sW, sW3, sCUR, sNXT, sPROD, sCONS, sREM, sC, sNC, sT, sNXT2, sPRV, sPRV2, sPLIM = range(32, 46)

def otile(t):
    return 64 + 16 * t if t < 4 else XR + 16 * (t - 4)
def qslot(n):
    return QR + 4 * n
QLD = [[1 + 4 * cc + j for j in range(4)] for cc in range(3)]
QTMP = [0, 3, 7]
QFIN = [[QTMP[cc], QLD[cc][1], QLD[cc][0], QLD[cc][3]] for cc in range(3)]
def qfrag(s):
    return qslot(QFIN[s // 4][s % 4])

def cost(s):
    return 2 if s.startswith("v_exp") or s.startswith("v_rcp") else 1

class Path:
    def __init__(self):
        self.pro, self.body, self.waits, self.inpro = [], [], [], True

class G:
    def __init__(self, a):
        self.a = a
        fl = lambda s: "".join(" " + x for x in s.split(",") if x)
        self.ld, self.st, self.ldq = fl(a.ld), fl(a.st), fl(a.ldq if a.ldq is not None else a.ld)
        self.o = []
        self.nlab = 0
        self.common = []
        self.p = None
    def e(self, s):
        self.o.append("    " + s)
    def lab(self, s):
        self.o.append(s + ":")
    def c(self, s):
        self.o.append("    ; " + s)
    def vm(self, s, tag):
        if self.a.win and not self.p.inpro:
            self.e(f"s_waitcnt vmcnt({self.a.win - 1})")
        self.e(s)
        (self.p.pro if self.p.inpro else self.p.body).append(tag)
    def emit(self, x):
        if isinstance(x, tuple): self.vm(*x)
        else: self.e(x)
    def wait_for(self, tag):
        self.o.append(None)
        p = self.p
        p.waits.append((len(self.o) - 1, tag, p.inpro, len(p.pro) if p.inpro else len(p.body)))

    def trace(self, vreg, inc=False):
        if self.a.rtrace and inc:
            self.a.htrace = True; self.htrace(); self.a.htrace = False
        if not self.a.trace:
            return
        e = self.e
        e("s_memtime s[64:65]")
        e("s_mov_b32 m0, s66")
        e("s_waitcnt lgkmcnt(0)")
        e(f"v_writelane_b32 v{vreg}, s64, m0")
        if inc:
            e("s_add_u32 s66, s66, 1")

    def htrace(self):
        if not self.a.htrace:
            return
        e = self.e
        e("s_memrealtime s[64:65]")
        e("s_memtime s[68:69]")
        e("s_mov_b32 m0, s66")
        e("s_waitcnt lgkmcnt(0)")
        e(f"v_writelane_b32 v{TR0}, s64, m0")
        e(f"v_writelane_b32 v{TR1}, s68, m0")
        e("s_add_u32 s66, s66, 1")

    def dma_list(self, t, rel, hd):
        srd = SK if t < 4 else SV
        headreg = sNXT if rel else sCUR
        off = (t % 4) * TILE
        o = []
        if rel:
            o += [f"s_cmp_eq_u32 s{sREM}, 1", f"s_cselect_b32 s{srd+2}, 0, s{srd+2}"]
        o.append(f"s_mov_b32 m0, s{sPROD}")
        if off:
            o.append(f"s_add_u32 s{sT}, s{headreg}, {off}")
            so = sT
        else:
            o.append("s_nop 0")
            so = headreg
        for i in range(3):
            of = f" offset:{1024*i}" if i else ""
            o.append((f"buffer_load_dwordx4 v{VD+i}, s[{srd}:{srd+3}], s{so} offen{of}{self.ld} lds", ("T", t, hd)))
        o += [f"s_add_u32 s{sPROD}, s{sPROD}, {TILE}",
              f"s_cmp_eq_u32 s{sPROD}, s{sPLIM}",
              f"s_cselect_b32 s{sPROD}, s{sW3}, s{sPROD}"]
        return o
    def qload(self, k, h0, h1, hd):
        cc, j = k // 4, k % 4
        r = qslot(QLD[cc][j])
        so = h1 if j >= 2 else h0
        off = (j & 1) * 3072 + 128 * cc
        o = f" offset:{off}" if off else ""
        return (f"buffer_load_dwordx4 v[{r}:{r+3}], v{VQO}, s[{SQ}:{SQ+3}], s{so} offen{o}{self.ldq}", ("Q", cc, hd))
    def oregs(self, cc):
        b = otile(2 * cc)
        return [b + 16, b + 4, b + 0, b + 12]
    def ostore(self, cc, j, hd):
        r = self.oregs(cc)[j]
        so = sPRV2 if j >= 2 else sPRV
        off = (j & 1) * 3072 + 128 * cc
        o = f" offset:{off}" if off else ""
        return (f"buffer_store_dwordx4 v[{r}:{r+3}], v{VQO}, s[{SO}:{SO+3}], s{so} offen{o}{self.st}", ("O", cc, hd))

    def transp(self, L, T):
        out = []
        for (a, b, d) in ((L[0], L[1], T), (L[2], L[3], L[0])):
            for k in range(4):
                out.append(f"v_cndmask_b32_dpp v{d+k}, v{b+k}, v{a+k}, vcc row_ror:8 row_mask:0xf bank_mask:0xf")
            for k in range(4):
                out.append(f"v_mov_b32_dpp v{b+k}, v{a+k} row_ror:8 row_mask:0xf bank_mask:0x3")
        F = [T, L[1], L[0], L[3]]
        for (a, b) in ((F[0], F[2]), (F[1], F[3])):
            for k in range(4):
                out.append(f"v_permlane16_swap_b32 v{a+k}, v{b+k}")
        return out

    def adv_cons(self):
        e = self.e
        e(f"s_add_u32 s{sCONS}, s{sCONS}, {TILE}")
        e(f"s_cmp_eq_u32 s{sCONS}, {NS*TILE}")
        e(f"s_cselect_b32 s{sCONS}, 0, s{sCONS}")

    def prologue(self):
        e, a = self.e, self.a
        e("s_cmp_ge_u32 s2, 256")
        e("s_cbranch_scc1 L_end")
        if a.stamp:
            e("s_memrealtime s[50:51]")
            e("s_memtime s[52:53]")
            e("s_load_dwordx2 s[48:49], s[0:1], 40")
            e("s_mov_b32 s66, 0")
        e("s_load_dwordx8 s[4:11], s[0:1], 0")
        e("v_and_b32 v1, 63, v0                 ; lane")
        e("v_lshrrev_b32 v2, 6, v0              ; wave")
        e("v_lshrrev_b32 v3, 3, v1              ; lane/8")
        e(f"v_readfirstlane_b32 s{sW}, v2")
        e("v_and_b32 v4, 7, v1                  ; lane%8")
        e("v_and_b32 v5, 1, v2")
        e("v_lshlrev_b32 v5, 1, v5              ; (w&1)<<1")
        e("v_mul_u32_u24 v6, 3072, v2           ; w*3072")
        e("v_lshl_add_u32 v6, v3, 7, v6         ; + (lane/8)*128")
        for i in range(3):
            e(f"v_add_u32 v7, {8*i}, v3")
            e("v_mul_u32_u24 v7, 11, v7")
            e("v_lshrrev_b32 v7, 5, v7")
            e("v_bfe_u32 v8, v7, 1, 1")
            e("v_lshlrev_b32 v8, 2, v8")
            e("v_bfe_u32 v9, v7, 2, 1")
            e("v_or3_b32 v8, v8, v9, v5             ; f(row)")
            e("v_xor_b32 v8, v8, v4")
            e(f"v_lshl_add_u32 v{VD+i}, v8, 4, v6")
        e("v_lshrrev_b32 v8, 5, v1              ; h")
        e("v_lshl_add_u32 v11, v2, 5, v4")
        e("v_mul_u32_u24 v11, 384, v11")
        e("v_and_b32 v12, 3, v3")
        e("v_lshl_add_u32 v11, v12, 5, v11")
        e(f"v_lshl_add_u32 v{VQO}, v8, 4, v11   ; (32w + lane%8)*384 + 32*((lane>>3)&3) + 16h")
        e(f"s_mul_i32 s{sW3}, s{sW}, 3072")
        e(f"s_mov_b32 s{sPROD}, s{sW3}")
        e(f"s_add_u32 s{sPLIM}, s{sW3}, {NS*TILE}")
        if a.xor:
            e(f"s_xor_b32 s2, s2, {a.xor}")
        e(f"s_mul_i32 s{sCUR}, s2, {HEAD_BYTES * a.hmul}")
        self.hstep = a.hstep * HEAD_BYTES
        e("s_waitcnt lgkmcnt(0)")
        for srd, p, n in ((SQ, 4, TENSOR_BYTES), (SK, 6, TENSOR_BYTES), (SV, 8, TENSOR_BYTES), (SO, 10, 0)):
            if a.noload and srd != SO:
                n = 0
            e(f"s_mov_b32 s{srd}, s{p}")
            e(f"s_and_b32 s{srd+1}, s{p+1}, 0xffff")
            e(f"s_mov_b32 s{srd+2}, {n}")
            e(f"s_mov_b32 s{srd+3}, 0x20000")

    def setup2(self):
        e = self.e
        e("v_and_b32 v7, 31, v1                 ; m")
        e("v_bfe_u32 v9, v7, 1, 1")
        e("v_lshlrev_b32 v9, 2, v9")
        e("v_bfe_u32 v10, v7, 2, 2")
        e("v_or_b32 v9, v9, v10                 ; f(m)")
        e("v_xor_b32 v9, v9, v8                 ; f(m)^h")
        e("v_mul_u32_u24 v10, 384, v7           ; m*384")
        e(f"v_lshl_add_u32 v{VA0}, v9, 4, v10")
        e("v_bfe_u32 v9, v1, 2, 2               ; r")
        e("v_lshl_add_u32 v10, v8, 2, v9        ; 4h+r")
        e("v_mul_u32_u24 v10, 384, v10")
        e("v_bfe_u32 v11, v1, 1, 1              ; cc>>1")
        e("v_lshl_add_u32 v10, v11, 3, v10      ; base")
        e("v_bfe_u32 v11, v1, 3, 1              ; r>>1")
        e("v_lshlrev_b32 v11, 2, v11")
        e("v_bfe_u32 v12, v1, 4, 1              ; up")
        e("v_lshlrev_b32 v12, 1, v12")
        e("v_and_b32 v13, 1, v1")
        e("v_xor_b32 v13, v13, v8               ; (cc&1)^h")
        e("v_or3_b32 v11, v11, v12, v13         ; x")
        e(f"v_lshl_add_u32 v{VB0}, v11, 4, v10")
        e(f"s_mov_b32 s{sCONS}, 0")
        e(f"s_mov_b32 s{sREM}, {NH}")
        c = 192 ** -0.5 * math.log2(math.e)
        e(f"s_mov_b32 s{sC}, {f32hex(c)}")
        e(f"s_mov_b32 s{sNC}, {f32hex(-c)}")
        e(f"s_add_u32 s{sNXT}, s{sCUR}, {self.hstep}")
        e(f"s_add_u32 s{sNXT2}, s{sNXT}, 6144")
        e(f"s_mov_b32 s{sPRV}, s{sCUR}")
        e(f"s_mov_b32 s{sPRV2}, s{sCUR}")
        e("s_mov_b32 vcc_lo, 0x00ff00ff")
        e("s_mov_b32 vcc_hi, 0x00ff00ff")

    def addr_calc(self, kind):
        base = VA0 if kind == "K" else VB0
        o = [f"v_add_u32 v{VC}, s{sCONS}, v{base}"]
        o += [f"v_xor_b32 v{VC+u}, {u<<5}, v{VC}" for u in range(1, 4)]
        o += [f"s_add_u32 s{sCONS}, s{sCONS}, {TILE}",
              f"s_cmp_eq_u32 s{sCONS}, {NS*TILE}",
              f"s_cselect_b32 s{sCONS}, 0, s{sCONS}"]
        return o
    def item_reads(self, kind, j):
        b = FB + 4 * (j % DEPTH)
        jj = j % 24
        if kind == "K":
            s, st = jj // 2, jj % 2
            return [f"ds_read_b128 v[{b}:{b+3}], v{VC+s%4} offset:{st*12288+128*(s//4)}"]
        ks, t = jj // 6, jj % 6
        off = ks * 6144 + (t // 2) * 128
        return [f"ds_read_b64_tr_b16 v[{b}:{b+1}], v{VC+2*(t%2)} offset:{off}",
                f"ds_read_b64_tr_b16 v[{b+2}:{b+3}], v{VC+2*(t%2)+1} offset:{off+3072}"]
    def item_mfma(self, kind, j):
        b = FB + 4 * (j % DEPTH)
        tl, jj = j // 24, j % 24
        if kind == "K":
            s, st = jj // 2, jj % 2
            D = S0 + 16 * (2 * tl + st)
            C = "0" if s == 0 else f"v[{D}:{D+15}]"
            q = qfrag(s)
            return f"v_mfma_f32_32x32x16_bf16 v[{D}:{D+15}], v[{b}:{b+3}], v[{q}:{q+3}], {C}"
        ks, t = jj // 6, jj % 6
        D = otile(t)
        P = 8 * (2 * tl + ks // 2) + 4 * (ks % 2)
        C = "0" if (tl == 0 and ks == 0) else f"v[{D}:{D+15}]"
        return f"v_mfma_f32_32x32x16_bf16 v[{D}:{D+15}], v[{b}:{b+3}], v[{P}:{P+3}], {C}"

    def plain(self, x):
        if isinstance(x, tuple):
            if x[0] == "WAIT": self.wait_for(x[1])
            elif x[0] == "LABEL": self.lab(x[1])
            else: self.vm(*x)
        elif self.a.nocompute and x.startswith(("v_", "ds_")):
            pass
        else:
            self.e(x)

    def preread(self, kind):
        for x in self.addr_calc(kind): self.plain(x)
        for j in range(DEPTH):
            for r in self.item_reads(kind, j): self.plain(r)

    def mblock(self, kind, sides, barrier):
        rpf = 1 if kind == "K" else 2
        pend = list(range(DEPTH))
        def req(j):
            for r in self.item_reads(kind, j): self.plain(r)
            pend.append(j)
        for j in range(96):
            tl, jj = j // 24, j % 24
            if j in pend:
                k = pend.index(j)
                if not self.a.nocompute:
                    self.e(f"s_waitcnt lgkmcnt({(len(pend) - k - 1) * rpf})")
                del pend[:k + 1]
            self.plain(self.item_mfma(kind, j))
            if jj + DEPTH < 24:
                req(j + DEPTH)
            elif jj == 24 - DEPTH and tl < 3:
                for x in self.addr_calc(kind): self.plain(x)
            if jj == BARPOS:
                barrier(tl)
                pend.clear()
                if tl < 3:
                    for k in range(BARPOS + DEPTH - 23): req(24 * (tl + 1) + k)
            elif jj > BARPOS and tl < 3:
                req(j + DEPTH)
            for x in sides.get(j, []):
                self.plain(x)

    def max_list(self, tiles, first):
        o = []
        vals = [16 * t + i for t in tiles for i in range(16)]
        k = 0
        if first:
            o.append(f"v_max_f32 v{MX}, v{vals[0]}, v{vals[1]}")
            o.append(f"v_max_f32 v{MX+1}, v{vals[2]}, v{vals[3]}")
            k = 4
        ch = 0
        while k < len(vals):
            o.append(f"v_max3_f32 v{MX+ch}, v{MX+ch}, v{vals[k]}, v{vals[k+1]}")
            ch ^= 1
            k += 2
        return o

    def softmax_list(self, maxdone):
        a = self.a
        o = []
        e = o.append
        M, NEG, SUM = MX, MX + 2, MX + 4
        o += self.max_list(list(range(maxdone, 8)), maxdone == 0)
        e(f"v_max_f32 v{M}, v{M}, v{M+1}")
        e(f"v_mov_b32 v{M+1}, v{M}")
        e("s_nop 1")
        e(f"v_permlane32_swap_b32 v{M}, v{M+1}")
        e(f"v_max_f32 v{M}, v{M}, v{M+1}")
        e(f"v_mul_f32 v{NEG}, s{sNC}, v{M}")
        if a.pkfma:
            e(f"v_mov_b32 v{NEG+1}, s{sC}")
        def fma(i):
            if a.pkfma:
                e(f"v_pk_fma_f32 v[{2*i}:{2*i+1}], v[{2*i}:{2*i+1}], v[{NEG}:{NEG+1}], v[{NEG}:{NEG+1}] op_sel:[0,1,0] op_sel_hi:[1,1,0]")
            else:
                e(f"v_fma_f32 v{2*i}, v{2*i}, s{sC}, v{NEG}")
                e(f"v_fma_f32 v{2*i+1}, v{2*i+1}, s{sC}, v{NEG}")
        def ex(i):
            e(f"v_exp_f32 v{2*i}, v{2*i}")
            e(f"v_exp_f32 v{2*i+1}, v{2*i+1}")
        def fin(i):
            if i == 0:
                e(f"v_mov_b32 v{SUM}, v0")
                e(f"v_mov_b32 v{SUM+1}, v1")
            elif a.pkadd:
                e(f"v_pk_add_f32 v[{SUM}:{SUM+1}], v[{SUM}:{SUM+1}], v[{2*i}:{2*i+1}]")
            else:
                e(f"v_add_f32 v{SUM}, v{SUM}, v{2*i}")
                e(f"v_add_f32 v{SUM+1}, v{SUM+1}, v{2*i+1}")
            e(f"v_cvt_pk_bf16_f32 v{i}, v{2*i}, v{2*i+1}")
        fma(0); fma(1); ex(0)
        for i in range(64):
            if i + 2 < 64: fma(i + 2)
            if i + 1 < 64: ex(i + 1)
            else: e("s_nop 0")
            fin(i)
        e(f"v_add_f32 v{SUM}, v{SUM}, v{SUM+1}")
        e(f"v_mov_b32 v{SUM+1}, v{SUM}")
        e("s_nop 1")
        e(f"v_permlane32_swap_b32 v{SUM}, v{SUM+1}")
        e(f"v_add_f32 v{SUM}, v{SUM}, v{SUM+1}")
        e(f"v_rcp_f32 v{INV}, v{SUM}")
        return o

    def ochunk_list(self, cc):
        o = []
        b = otile(2 * cc)
        for i in range(4):
            if self.a.pkmul:
                for k in range(4):
                    r = b + 8 * i + 2 * k
                    o.append(f"v_pk_mul_f32 v[{r}:{r+1}], v[{r}:{r+1}], v[{INV}:{INV+1}] op_sel_hi:[1,0]")
            else:
                for k in range(8):
                    o.append(f"v_mul_f32 v{b+8*i+k}, v{b+8*i+k}, v{INV}")
            for k in range(4):
                o.append(f"v_cvt_pk_bf16_f32 v{b+4*i+k}, v{b+8*i+2*k}, v{b+8*i+2*k+1}")
        o += self.transp([b, b + 4, b + 8, b + 12], b + 16)
        return o
    def qt_list(self, cc):
        return self.transp([qslot(x) for x in QLD[cc]], qslot(QTMP[cc]))

    def vblock(self, lst, nparts, groups, barrier, nxt, tail):
        n = len(lst)
        cs = [0]
        for s in lst: cs.append(cs[-1] + (cost(s) if isinstance(s, str) else 0))
        lastpos = max(n - tail, 0)
        tot = cs[lastpos]
        cuts = []
        for p in range(1, nparts):
            cuts.append(min(i for i in range(n + 1) if cs[i] >= tot * p / nparts))
        cuts.append(lastpos)
        lo = 0
        ins = {}
        for p, hi in enumerate(cuts):
            g = groups[p]
            for k, grp in enumerate(g):
                ins.setdefault(lo + (k * (hi - lo)) // len(g), []).extend(grp)
            lo = hi
        for i in range(n + 1):
            if i in cuts:
                for p, cpos in enumerate(cuts):
                    if cpos == i:
                        barrier(p)
                        if p == nparts - 1 and nxt: self.preread(nxt)
            for x in ins.get(i, []): self.plain(x)
            if i < n: self.plain(lst[i])

    def group(self, name, lag):
        e, a = self.e, self.a
        phases = self.phases
        n = len(phases)
        p = self.p
        def dma_groups(g, pro):
            out = []
            for (t, ha) in self.issue[name].get(g % n, []):
                if pro:
                    out.append(self.dma_list(t, 0, 0)); assert ha == 0
                else:
                    rel = ha + (1 if g >= n else 0)
                    assert rel in (0, 1), (name, g, t, ha)
                    d = self.dma_list(t, rel, rel)
                    if g > n:
                        self.nlab += 1
                        d = [d[0], f"s_cbranch_scc1 L_nd{self.nlab}"] + d[2:] + [("LABEL", f"L_nd{self.nlab}")]
                    out.append(d)
            return out
        def end_interval(g, pro):
            self.trace(TR0)
            for (t, ha) in self.cert.get(g % n, []):
                self.wait_for(("T", t, ha if pro else ha + (1 if g >= n else 0)))
            e("s_waitcnt lgkmcnt(0)")
            if not pro and g >= n:
                self.nlab += 1
                e(f"s_cmp_eq_u32 s{sREM}, 1")
                e(f"s_cbranch_scc1 L_nb{self.nlab}")
                e("s_barrier")
                self.lab(f"L_nb{self.nlab}")
            else:
                e("s_barrier")
            self.trace(TR1, True)
        pt = self.pro_tiles[name]
        order = {"A": [0, "Q"] + pt[1:], "B": pt + ["Q"]}[name]
        for step in order:
            if step == "Q":
                e(f"s_add_u32 s{sT}, s{sCUR}, 6144")
                for k in range(12):
                    self.vm(*self.qload(k, sCUR, sT, 0))
            else:
                for x in self.dma_list(step, 0, 0): self.emit(x)
        self.setup2()
        self.wait_for(("T", 0, 0))
        e("s_barrier")
        for g in range(lag):
            for grp in dma_groups(g, True):
                for x in grp: self.emit(x)
            end_interval(g, True)
        self.preread("K")
        for cc in range(3):
            self.wait_for(("Q", cc, 0))
            for s in self.qt_list(cc): self.plain(s)
        p.inpro = False
        self.o.append(".p2align 6")
        self.lab(f"L_head{name}{self.sfx}")
        self.htrace()
        place = dict(x.split(":") for x in (a.placeA if name == "A" else a.placeB).split(","))
        qdist = dict(zip(phases, [int(x) for x in (a.qdistA if name == "A" else a.qdistB).split(",")]))
        assert sum(qdist.values()) == 12
        ql = [self.qload(k, sNXT, sNXT2, 1) for k in range(12)]
        qpre = [f"s_cmp_eq_u32 s{sREM}, 1", f"s_cselect_b32 s{SQ+2}, 0, s{SQ+2}"]
        units = {}
        for cc in range(3):
            units[f"O{cc}"] = self.ochunk_list(cc)
            units[f"T{cc}"] = [("WAIT", ("Q", cc, 1))] + self.qt_list(cc)
        wdist = dict(zip(phases, [int(x) for x in (a.wdistA if name == "A" else a.wdistB).split(",")]))
        assert sum(wdist.values()) == 12
        idx = {ph: i for i, ph in enumerate(phases)}
        e0 = idx["E0"]
        cyc = lambda ph: (idx[ph] - e0) % n
        wl = [(cc, j) for cc in range(3) for j in range(4)]
        wat = {}
        for ph in sorted(phases, key=cyc):
            wat[ph] = [wl.pop(0) for _ in range(wdist[ph])]
            for (cc, j) in wat[ph]:
                assert cyc(ph) > cyc(place[f"O{cc}"]), ("store before its chunk", ph, cc)
                lastok = ("K1", "K2", [x for x in phases if x[0] == "S"][-1])[cc]
                assert cyc(ph) <= cyc(lastok), ("store too late", ph, cc)
        mem, val = {}, {}
        for pi, ph in enumerate(phases):
            g = dma_groups(pi + lag, False)
            for k in range(qdist[ph]):
                g.append((qpre if len(ql) == 12 else []) + [ql.pop(0)])
            g += [[self.ostore(cc, j, -1 if ph[0] != "E" else 0)] for (cc, j) in wat[ph]]
            mem[ph] = g
            v = []
            for u in ("O0", "O1", "O2", "T0", "T1", "T2"):
                if place[u] == ph: v += units[u]
            val[ph] = v
        def msides(kind):
            sides = {}
            for tl in range(4):
                ph = f"{kind}{tl}"
                lo, hi = (24 * tl - 2 if tl else 0), 24 * tl + BARPOS - 1
                v = list(val[ph])
                if kind == "K" and a.maxk and tl >= 1:
                    v = v + self.max_list([2 * tl - 2, 2 * tl - 1], tl == 1)
                vlo = 24 * tl + 5 if (kind == "K" and a.maxk and tl >= 1 and not val[ph]) else lo
                for k, s in enumerate(v):
                    sides.setdefault(vlo + (k * (hi - vlo + 1)) // len(v), []).append(s)
                g = mem[ph]
                for k, grp in enumerate(g):
                    sides.setdefault(lo + (k * (hi - lo + 1)) // len(g), []).extend(grp)
            return sides
        nsm = sum(1 for x in phases if x[0] == "S")
        nem = sum(1 for x in phases if x[0] == "E")
        self.c(f"---- {name}: K block")
        if a.prio: e(f"s_setprio {a.prio}")
        self.mblock("K", msides("K"), lambda t: end_interval(idx[f"K{t}"] + lag, False))
        self.c(f"---- {name}: softmax")
        if a.prio: e("s_setprio 0")
        e("s_nop 7")
        e("s_nop 2")
        self.vblock(self.softmax_list(6 if a.maxk else 0), nsm, [mem[f"S{i}"] for i in range(nsm)],
                    lambda i: end_interval(idx[f"S{i}"] + lag, False), "V", a.tail)
        self.c(f"---- {name}: V block")
        self.htrace()
        if a.prio: e(f"s_setprio {a.prio}")
        self.mblock("V", msides("V"), lambda t: end_interval(idx[f"V{t}"] + lag, False))
        self.c(f"---- {name}: E")
        if a.prio: e("s_setprio 0")
        e(f"s_mov_b32 s{sPRV}, s{sCUR}")
        e(f"s_add_u32 s{sPRV2}, s{sCUR}, 6144")
        e(f"s_mov_b32 s{SO+2}, {0 if a.nostore else TENSOR_BYTES}")
        e("s_nop 3")
        for i in range(nem):
            last = i == nem - 1
            self.vblock(val[f"E{i}"], 1, [mem[f"E{i}"]], lambda _: end_interval(idx[f"E{i}"] + lag, False),
                        "K" if last else None, a.tail if last else 0)
        e(f"s_mov_b32 s{sCUR}, s{sNXT}")
        e(f"s_add_u32 s{sNXT}, s{sNXT}, {self.hstep}")
        e(f"s_add_u32 s{sNXT2}, s{sNXT}, 6144")
        e(f"s_sub_u32 s{sREM}, s{sREM}, 1")
        e(f"s_cmp_lg_u32 s{sREM}, 0")
        e(f"s_cbranch_scc1 L_head{name}{self.sfx}")
        self.c("---- last head: what the next head's K block would have done")
        done = [x for ph in phases if ph[0] == "E" for x in wat[ph]]
        for cc in range(3):
            if place[f"O{cc}"][0] != "E":
                for x in units[f"O{cc}"]: self.plain(x)
            for j in range(4):
                if (cc, j) not in done: e(self.ostore(cc, j, 0)[0])

    def check_schedule(self, name):
        n, lag = len(self.phases), self.a.lag
        rd = {int(ph[1]) + (4 if ph[0] == "V" else 0): i for i, ph in enumerate(self.phases) if ph[0] in "KV"}
        iss, cer = {}, {}
        for h in range(-1, 4):
            for g in range(n):
                for (t, ha) in self.issue[name].get(g, []): iss[8 * (h + ha) + t] = n * h + g
                for (t, ha) in self.cert.get(g, []): cer[8 * (h + ha) + t] = n * h + g
        order = sorted(iss, key=lambda x: (iss[x], x))
        assert order == sorted(order), "issue order must be stream order"
        for x in range(8, 24):
            h, t = divmod(x, 8)
            ra = n * h + rd[t]
            assert cer[x] < ra, ("cert", x)
            assert iss[x] <= cer[x], ("iss/cert", x)
            ho, to = divmod(x - NS, 8)
            assert iss[x] > n * ho + rd[to] + lag, ("slot", x, iss[x], n * ho + rd[to] + lag)
        self.pro_tiles[name] = [t for t in range(8) if iss[t] < 0]
        assert self.pro_tiles[name] == list(range(len(self.pro_tiles[name])))
        for t in range(1, 8):
            assert cer[t] >= 0, ("first-head cert", t)

    def schedule(self):
        a = self.a
        self.phases = a.phases.split(",")
        n = len(self.phases)
        rd = {int(ph[1]) + (4 if ph[0] == "V" else 0): i for i, ph in enumerate(self.phases) if ph[0] in "KV"}
        self.issue, self.cert, self.pro_tiles = {"A": {}, "B": {}}, {}, {}
        for name, dd in (("A", a.dist), ("B", a.distB or a.dist)):
            dist = [int(x) for x in dd.split(",")]
            for t in range(8):
                g = rd[t] - dist[t]
                self.issue[name].setdefault(g % n, []).append((t, 1 if g < 0 else 0))
            for g in self.issue[name]: self.issue[name][g].sort(key=lambda x: (x[1], x[0]))
        for t in range(8):
            g = rd[t] - 1
            self.cert.setdefault(g % n, []).append((t, 1 if g < 0 else 0))
        for name in "AB": self.check_schedule(name)

    def build(self, odd=None):
        e, a = self.e, self.a
        lds = NS * TILE
        self.o.append(HEADER + f"; @launch grid=(256,1,1) block=(512,1,1) lds={lds}")
        self.o.append('.amdgcn_target "amdgcn-amd-amdhsa--gfx950"')
        self.o.append(".text")
        self.o.append(f".globl {NAME}_kernel")
        self.o.append(".p2align 8")
        self.o.append(f".type {NAME}_kernel,@function")
        self.lab(f"{NAME}_kernel")
        self.p = Path()
        self.prologue()
        common = list(self.p.pro)
        paths = []
        variants = [("", a)] + ([("o", odd)] if odd else [])
        if odd:
            e(f"s_getreg_b32 s{sT}, hwreg(HW_REG_XCC_ID)")
            e(f"s_bitcmp1_b32 s{sT}, 0")
            e("s_cbranch_scc1 L_varo")
        for sfx, va in variants:
            self.a = va
            self.schedule()
            if sfx: self.lab("L_var" + sfx)
            e(f"s_cmp_ge_u32 s{sW}, 4")
            e(f"s_cbranch_scc1 L_grpB{sfx}")
            for name, lag in (("A", 0), ("B", va.lag)):
                if name == "B": self.lab("L_grpB" + sfx)
                self.p = Path(); self.p.pro = list(common)
                self.sfx = sfx
                self.group(name, lag)
                paths.append(self.p)
                if not (name == "B" and va is variants[-1][1]): e("s_branch L_fin")
        self.a = a
        self.lab("L_fin")
        if a.stamp:
            e("s_waitcnt vmcnt(0)")
            e("s_memrealtime s[54:55]")
            e("s_memtime s[56:57]")
            e("s_getreg_b32 s58, hwreg(HW_REG_XCC_ID)")
            e("s_getreg_b32 s67, hwreg(HW_REG_HW_ID)")
            e("s_waitcnt lgkmcnt(0)")
            e(f"s_lshl_b32 s59, s2, 3")
            e(f"s_add_u32 s59, s59, s{sW}")
            e(f"s_lshl_b32 s59, s59, 5")
            e("s_mov_b32 s60, s48")
            e("s_and_b32 s61, s49, 0xffff")
            e("s_mov_b32 s62, 65536")
            e("s_mov_b32 s63, 0x20000")
            for k, r in enumerate((50, 51, 54, 55, 52, 56, 58, 67)):
                e(f"v_mov_b32 v{k}, s{r}")
            e("v_mov_b32 v8, 0")
            e("s_mov_b64 exec, 1")
            e("buffer_store_dwordx4 v[0:3], v8, s[60:63], s59 offen")
            e("buffer_store_dwordx4 v[4:7], v8, s[60:63], s59 offen offset:16")
            if a.trace or a.htrace or a.rtrace:
                e("s_mov_b64 exec, -1")
                e("s_mov_b32 s62, 0x1000000")
                e("v_mbcnt_lo_u32_b32 v8, -1, 0")
                e("v_mbcnt_hi_u32_b32 v8, -1, v8")
                e("v_lshlrev_b32 v8, 2, v8")
                e("s_lshl_b32 s59, s59, 4")
                e("s_add_u32 s59, s59, 65536")
                e(f"buffer_store_dword v{TR0}, v8, s[60:63], s59 offen")
                e(f"buffer_store_dword v{TR1}, v8, s[60:63], s59 offen offset:256")
        e("s_waitcnt vmcnt(0)")
        self.lab("L_end")
        e("s_endpgm")
        for p in paths: self.resolve_waits(p)
        self.o.append(f""".section .rodata,"a"
.p2align 6
.amdhsa_kernel {NAME}_kernel
  .amdhsa_next_free_vgpr {NV}
  .amdhsa_next_free_sgpr 72
  .amdhsa_accum_offset {NV}
  .amdhsa_group_segment_fixed_size 0
  .amdhsa_kernarg_size 48
  .amdhsa_user_sgpr_count 2
  .amdhsa_user_sgpr_kernarg_segment_ptr 1
  .amdhsa_system_sgpr_workgroup_id_x 1
.end_amdhsa_kernel
""")
        return "\n".join(self.o)

    def resolve_waits(self, p):
        for (idx, tag, inpro, pos) in p.waits:
            c = []
            if inpro:
                seq = p.pro[:pos]
                last = max(i for i, t in enumerate(seq) if t == tag)
                c.append(len(seq) - 1 - last)
            else:
                for it in range(NH):
                    seq = list(p.pro)
                    for j in range(it + 1):
                        b = p.body if j < it else p.body[:pos]
                        seq += [(k, x, h + j) for (k, x, h) in b]
                    want = (tag[0], tag[1], tag[2] + it)
                    last = max(i for i, t in enumerate(seq) if t == want)
                    c.append(len(seq) - 1 - last)
            nn = min(c)
            assert nn <= 63
            self.o[idx] = f"    s_waitcnt vmcnt({nn})"

if __name__ == "__main__":
    ap = argparse.ArgumentParser()
    ap.add_argument("-o", default=f"cdna_kernels/{NAME}.s")
    ap.add_argument("--ld", default="nt")
    ap.add_argument("--ldq", default=None)
    ap.add_argument("--st", default="")
    ap.add_argument("--win", type=int, default=0)
    ap.add_argument("--xor", type=int, default=0)
    ap.add_argument("--hmul", type=int, default=1)
    ap.add_argument("--hstep", type=int, default=256)
    ap.add_argument("--lag", type=int, default=4)
    ap.add_argument("--prio", type=int, default=0)
    ap.add_argument("--tail", type=int, default=24)
    ap.add_argument("--phases", default="K0,K1,K2,K3,S0,S1,S2,S3,V0,V1,V2,V3,E0,E1,E2,E3")
    ap.add_argument("--dist", default="7,6,5,4,7,6,5,4")
    ap.add_argument("--distB", default="6,5,4,3,6,5,4,3")
    ap.add_argument("--wdistA", default="3,0,0,0,0,0,0,0,0,0,0,0,0,3,3,3")
    ap.add_argument("--wdistB", default="3,0,0,0,0,0,0,0,0,0,0,0,0,3,3,3")
    ap.add_argument("--qdistA", default="0,0,0,0,0,3,3,3,3,0,0,0,0,0,0,0")
    ap.add_argument("--qdistB", default="0,0,0,0,0,3,3,3,3,0,0,0,0,0,0,0")
    ap.add_argument("--placeA", default="O0:E0,O1:E1,O2:E2,T0:E3,T1:E3,T2:E3")
    ap.add_argument("--placeB", default="O0:E0,O1:E1,O2:E2,T0:E3,T1:E3,T2:E3")
    for k in ("nocompute", "nostore", "stamp", "noload", "trace", "htrace", "rtrace", "pkfma", "pkadd", "pkmul", "maxk"):
        ap.add_argument("--" + k, action="store_true")
    ap.add_argument("--odd", default=None)
    a = ap.parse_args()
    odd = None
    if a.odd is not None:
        odd = ap.parse_args(sys.argv[1:] + a.odd.split())
    open(a.o, "w").write(G(a).build(odd))
```

```python
import struct, math, sys, argparse

NAME = "standalone__mha_softmax__near_ridge"
HEAD_BYTES = 256 * 384
TENSOR_BYTES = 1024 * HEAD_BYTES
TILE = 64 * 384
NS = 6
NH = 4
DEPTH = 6
BARPOS = 20

def f32hex(x):
    return "0x%08x" % struct.unpack("<I", struct.pack("<f", x))[0]

HEADER = """; Kernarg layout for this problem (48 bytes, ptrs only, base s[0:1]):
"""

S0 = 0
QR = 128
XR = 180
FB = 212
TR0, TR1 = 236, 237
MX = 238
VD = 244
VA0 = 247
VB0 = 248
VC = 249
VQO = 253
INV = 254
NV = 256

SQ, SK, SV, SO = 12, 16, 20, 24
sW, sW3, sCUR, sNXT, sPROD, sCONS, sREM, sC, sNC, sT, sNXT2, sPRV, sPRV2, sPLIM = range(32, 46)

def otile(t):
    return 64 + 16 * t if t < 4 else XR + 16 * (t - 4)
def qslot(n):
    return QR + 4 * n
QLD = [[1 + 4 * cc + j for j in range(4)] for cc in range(3)]
QTMP = [0, 3, 7]
QFIN = [[QTMP[cc], QLD[cc][1], QLD[cc][0], QLD[cc][3]] for cc in range(3)]
def qfrag(s):
    return qslot(QFIN[s // 4][s % 4])

def cost(s):
    return 2 if s.startswith("v_exp") or s.startswith("v_rcp") else 1

class Path:
    def __init__(self):
        self.pro, self.body, self.waits, self.inpro = [], [], [], True

class G:
    def __init__(self, a):
        self.a = a
        fl = lambda s: "".join(" " + x for x in s.split(",") if x)
        self.ld, self.st, self.ldq = fl(a.ld), fl(a.st), fl(a.ldq if a.ldq is not None else a.ld)
        self.o = []
        self.nlab = 0
        self.common = []
        self.p = None
    def e(self, s):
        self.o.append("    " + s)
    def lab(self, s):
        self.o.append(s + ":")
    def c(self, s):
        self.o.append("    ; " + s)
    def vm(self, s, tag):
        if self.a.win and not self.p.inpro:
            self.e(f"s_waitcnt vmcnt({self.a.win - 1})")
        self.e(s)
        (self.p.pro if self.p.inpro else self.p.body).append(tag)
    def emit(self, x):
        if isinstance(x, tuple): self.vm(*x)
        else: self.e(x)
    def wait_for(self, tag):
        self.o.append(None)
        p = self.p
        p.waits.append((len(self.o) - 1, tag, p.inpro, len(p.pro) if p.inpro else len(p.body)))

    def trace(self, vreg, inc=False):
        if self.a.rtrace and inc:
            self.a.htrace = True; self.htrace(); self.a.htrace = False
        if not self.a.trace:
            return
        e = self.e
        e("s_memtime s[64:65]")
        e("s_mov_b32 m0, s66")
        e("s_waitcnt lgkmcnt(0)")
        e(f"v_writelane_b32 v{vreg}, s64, m0")
        if inc:
            e("s_add_u32 s66, s66, 1")

    def htrace(self):
        if not self.a.htrace:
            return
        e = self.e
        e("s_memrealtime s[64:65]")
        e("s_memtime s[68:69]")
        e("s_mov_b32 m0, s66")
        e("s_waitcnt lgkmcnt(0)")
        e(f"v_writelane_b32 v{TR0}, s64, m0")
        e(f"v_writelane_b32 v{TR1}, s68, m0")
        e("s_add_u32 s66, s66, 1")

    def dma_list(self, t, rel, hd):
        srd = SK if t < 4 else SV
        headreg = sNXT if rel else sCUR
        off = (t % 4) * TILE
        o = []
        if rel:
            o += [f"s_cmp_eq_u32 s{sREM}, 1", f"s_cselect_b32 s{srd+2}, 0, s{srd+2}"]
        o.append(f"s_mov_b32 m0, s{sPROD}")
        if off:
            o.append(f"s_add_u32 s{sT}, s{headreg}, {off}")
            so = sT
        else:
            o.append("s_nop 0")
            so = headreg
        for i in range(3):
            of = f" offset:{1024*i}" if i else ""
            o.append((f"buffer_load_dwordx4 v{VD+i}, s[{srd}:{srd+3}], s{so} offen{of}{self.ld} lds", ("T", t, hd)))
        o += [f"s_add_u32 s{sPROD}, s{sPROD}, {TILE}",
              f"s_cmp_eq_u32 s{sPROD}, s{sPLIM}",
              f"s_cselect_b32 s{sPROD}, s{sW3}, s{sPROD}"]
        return o
    def qload(self, k, h0, h1, hd):
        cc, j = k // 4, k % 4
        r = qslot(QLD[cc][j])
        so = h1 if j >= 2 else h0
        off = (j & 1) * 3072 + 128 * cc
        o = f" offset:{off}" if off else ""
        return (f"buffer_load_dwordx4 v[{r}:{r+3}], v{VQO}, s[{SQ}:{SQ+3}], s{so} offen{o}{self.ldq}", ("Q", cc, hd))
    def oregs(self, cc):
        b = otile(2 * cc)
        return [b + 16, b + 4, b + 0, b + 12]
    def ostore(self, cc, j, hd):
        r = self.oregs(cc)[j]
        so = sPRV2 if j >= 2 else sPRV
        off = (j & 1) * 3072 + 128 * cc
        o = f" offset:{off}" if off else ""
        return (f"buffer_store_dwordx4 v[{r}:{r+3}], v{VQO}, s[{SO}:{SO+3}], s{so} offen{o}{self.st}", ("O", cc, hd))

    def transp(self, L, T):
        out = []
        for (a, b, d) in ((L[0], L[1], T), (L[2], L[3], L[0])):
            for k in range(4):
                out.append(f"v_cndmask_b32_dpp v{d+k}, v{b+k}, v{a+k}, vcc row_ror:8 row_mask:0xf bank_mask:0xf")
            for k in range(4):
                out.append(f"v_mov_b32_dpp v{b+k}, v{a+k} row_ror:8 row_mask:0xf bank_mask:0x3")
        F = [T, L[1], L[0], L[3]]
        for (a, b) in ((F[0], F[2]), (F[1], F[3])):
            for k in range(4):
                out.append(f"v_permlane16_swap_b32 v{a+k}, v{b+k}")
        return out

    def adv_cons(self):
        e = self.e
        e(f"s_add_u32 s{sCONS}, s{sCONS}, {TILE}")
        e(f"s_cmp_eq_u32 s{sCONS}, {NS*TILE}")
        e(f"s_cselect_b32 s{sCONS}, 0, s{sCONS}")

    def prologue(self):
        e, a = self.e, self.a
        e("s_cmp_ge_u32 s2, 256")
        e("s_cbranch_scc1 L_end")
        if a.stamp or a.dbg:
            e("s_memrealtime s[50:51]")
            e("s_memtime s[52:53]")
            e(f"s_load_dwordx2 s[48:49], s[0:1], {32 if a.dbg else 40}")
            e("s_mov_b32 s66, 0")
        e("s_load_dwordx8 s[4:11], s[0:1], 0")
        e("v_and_b32 v1, 63, v0                 ; lane")
        e("v_lshrrev_b32 v2, 6, v0              ; wave")
        e("v_lshrrev_b32 v3, 3, v1              ; lane/8")
        e(f"v_readfirstlane_b32 s{sW}, v2")
        e("v_and_b32 v4, 7, v1                  ; lane%8")
        e("v_and_b32 v5, 1, v2")
        e("v_lshlrev_b32 v5, 1, v5              ; (w&1)<<1")
        e("v_mul_u32_u24 v6, 3072, v2           ; w*3072")
        e("v_lshl_add_u32 v6, v3, 7, v6         ; + (lane/8)*128")
        for i in range(3):
            e(f"v_add_u32 v7, {8*i}, v3")
            e("v_mul_u32_u24 v7, 11, v7")
            e("v_lshrrev_b32 v7, 5, v7")
            e("v_bfe_u32 v8, v7, 1, 1")
            e("v_lshlrev_b32 v8, 2, v8")
            e("v_bfe_u32 v9, v7, 2, 1")
            e("v_or3_b32 v8, v8, v9, v5             ; f(row)")
            e("v_xor_b32 v8, v8, v4")
            e(f"v_lshl_add_u32 v{VD+i}, v8, 4, v6")
        e("v_lshrrev_b32 v8, 5, v1              ; h")
        e("v_lshl_add_u32 v11, v2, 5, v4")
        e("v_mul_u32_u24 v11, 384, v11")
        e("v_and_b32 v12, 3, v3")
        e("v_lshl_add_u32 v11, v12, 5, v11")
        e(f"v_lshl_add_u32 v{VQO}, v8, 4, v11   ; (32w + lane%8)*384 + 32*((lane>>3)&3) + 16h")
        e(f"s_mul_i32 s{sW3}, s{sW}, 3072")
        e(f"s_mov_b32 s{sPROD}, s{sW3}")
        e(f"s_add_u32 s{sPLIM}, s{sW3}, {NS*TILE}")
        if a.xor:
            e(f"s_xor_b32 s2, s2, {a.xor}")
        e(f"s_mul_i32 s{sCUR}, s2, {HEAD_BYTES * a.hmul}")
        self.hstep = a.hstep * HEAD_BYTES
        e("s_waitcnt lgkmcnt(0)")
        for srd, p, n in ((SQ, 4, TENSOR_BYTES), (SK, 6, TENSOR_BYTES), (SV, 8, TENSOR_BYTES), (SO, 10, 0)):
            if a.noload and srd != SO:
                n = 0
            e(f"s_mov_b32 s{srd}, s{p}")
            e(f"s_and_b32 s{srd+1}, s{p+1}, 0xffff")
            e(f"s_mov_b32 s{srd+2}, {n}")
            e(f"s_mov_b32 s{srd+3}, 0x20000")

    def setup2(self):
        e = self.e
        e("v_and_b32 v7, 31, v1                 ; m")
        e("v_bfe_u32 v9, v7, 1, 1")
        e("v_lshlrev_b32 v9, 2, v9")
        e("v_bfe_u32 v10, v7, 2, 2")
        e("v_or_b32 v9, v9, v10                 ; f(m)")
        e("v_xor_b32 v9, v9, v8                 ; f(m)^h")
        e("v_mul_u32_u24 v10, 384, v7           ; m*384")
        e(f"v_lshl_add_u32 v{VA0}, v9, 4, v10")
        e("v_bfe_u32 v9, v1, 2, 2               ; r")
        e("v_lshl_add_u32 v10, v8, 2, v9        ; 4h+r")
        e("v_mul_u32_u24 v10, 384, v10")
        e("v_bfe_u32 v11, v1, 1, 1              ; cc>>1")
        e("v_lshl_add_u32 v10, v11, 3, v10      ; base")
        e("v_bfe_u32 v11, v1, 3, 1              ; r>>1")
        e("v_lshlrev_b32 v11, 2, v11")
        e("v_bfe_u32 v12, v1, 4, 1              ; up")
        e("v_lshlrev_b32 v12, 1, v12")
        e("v_and_b32 v13, 1, v1")
        e("v_xor_b32 v13, v13, v8               ; (cc&1)^h")
        e("v_or3_b32 v11, v11, v12, v13         ; x")
        e(f"v_lshl_add_u32 v{VB0}, v11, 4, v10")
        e(f"s_mov_b32 s{sCONS}, 0")
        e(f"s_mov_b32 s{sREM}, {NH}")
        c = 192 ** -0.5 * math.log2(math.e)
        e(f"s_mov_b32 s{sC}, {f32hex(c)}")
        e(f"s_mov_b32 s{sNC}, {f32hex(-c)}")
        e(f"s_add_u32 s{sNXT}, s{sCUR}, {self.hstep}")
        e(f"s_add_u32 s{sNXT2}, s{sNXT}, 6144")
        e(f"s_mov_b32 s{sPRV}, s{sCUR}")
        e(f"s_mov_b32 s{sPRV2}, s{sCUR}")
        e("s_mov_b32 vcc_lo, 0x00ff00ff")
        e("s_mov_b32 vcc_hi, 0x00ff00ff")

    def addr_calc(self, kind):
        base = VA0 if kind == "K" else VB0
        o = [f"v_add_u32 v{VC}, s{sCONS}, v{base}"]
        o += [f"v_xor_b32 v{VC+u}, {u<<5}, v{VC}" for u in range(1, 4)]
        o += [f"s_add_u32 s{sCONS}, s{sCONS}, {TILE}",
              f"s_cmp_eq_u32 s{sCONS}, {NS*TILE}",
              f"s_cselect_b32 s{sCONS}, 0, s{sCONS}"]
        return o
    def item_reads(self, kind, j):
        b = FB + 4 * (j % DEPTH)
        jj = j % 24
        if kind == "K":
            s, st = jj // 2, jj % 2
            return [f"ds_read_b128 v[{b}:{b+3}], v{VC+s%4} offset:{st*12288+128*(s//4)}"]
        ks, t = jj // 6, jj % 6
        off = ks * 6144 + (t // 2) * 128
        return [f"ds_read_b64_tr_b16 v[{b}:{b+1}], v{VC+2*(t%2)} offset:{off}",
                f"ds_read_b64_tr_b16 v[{b+2}:{b+3}], v{VC+2*(t%2)+1} offset:{off+3072}"]
    def item_mfma(self, kind, j):
        b = FB + 4 * (j % DEPTH)
        tl, jj = j // 24, j % 24
        if kind == "K":
            s, st = jj // 2, jj % 2
            D = S0 + 16 * (2 * tl + st)
            C = "0" if s == 0 else f"v[{D}:{D+15}]"
            q = qfrag(s)
            return f"v_mfma_f32_32x32x16_bf16 v[{D}:{D+15}], v[{b}:{b+3}], v[{q}:{q+3}], {C}"
        ks, t = jj // 6, jj % 6
        D = otile(t)
        P = 8 * (2 * tl + ks // 2) + 4 * (ks % 2)
        C = "0" if (tl == 0 and ks == 0) else f"v[{D}:{D+15}]"
        return f"v_mfma_f32_32x32x16_bf16 v[{D}:{D+15}], v[{b}:{b+3}], v[{P}:{P+3}], {C}"

    def plain(self, x):
        if isinstance(x, tuple):
            if x[0] == "WAIT": self.wait_for(x[1])
            elif x[0] == "LABEL": self.lab(x[1])
            else: self.vm(*x)
        elif self.a.nocompute and x.startswith(("v_", "ds_")):
            pass
        else:
            self.e(x)

    def preread(self, kind):
        for x in self.addr_calc(kind): self.plain(x)
        for j in range(DEPTH):
            for r in self.item_reads(kind, j): self.plain(r)

    def mblock(self, kind, sides, barrier):
        rpf = 1 if kind == "K" else 2
        pend = list(range(DEPTH))
        def req(j):
            for r in self.item_reads(kind, j): self.plain(r)
            pend.append(j)
        for j in range(96):
            tl, jj = j // 24, j % 24
            if j in pend:
                k = pend.index(j)
                if not self.a.nocompute:
                    self.e(f"s_waitcnt lgkmcnt({(len(pend) - k - 1) * rpf})")
                del pend[:k + 1]
            self.plain(self.item_mfma(kind, j))
            if jj + DEPTH < 24:
                req(j + DEPTH)
            elif jj == 24 - DEPTH and tl < 3:
                for x in self.addr_calc(kind): self.plain(x)
            if jj == BARPOS:
                barrier(tl)
                pend.clear()
                if tl < 3:
                    for k in range(BARPOS + DEPTH - 23): req(24 * (tl + 1) + k)
            elif jj > BARPOS and tl < 3:
                req(j + DEPTH)
            for x in sides.get(j, []):
                self.plain(x)

    def max_list(self, tiles, first):
        o = []
        vals = [16 * t + i for t in tiles for i in range(16)]
        k = 0
        if first:
            o.append(f"v_max_f32 v{MX}, v{vals[0]}, v{vals[1]}")
            o.append(f"v_max_f32 v{MX+1}, v{vals[2]}, v{vals[3]}")
            k = 4
        ch = 0
        while k < len(vals):
            o.append(f"v_max3_f32 v{MX+ch}, v{MX+ch}, v{vals[k]}, v{vals[k+1]}")
            ch ^= 1
            k += 2
        return o

    def softmax_list(self, maxdone):
        a = self.a
        o = []
        e = o.append
        M, NEG, SUM = MX, MX + 2, MX + 4
        o += self.max_list(list(range(maxdone, 8)), maxdone == 0)
        e(f"v_max_f32 v{M}, v{M}, v{M+1}")
        e(f"v_mov_b32 v{M+1}, v{M}")
        e("s_nop 1")
        e(f"v_permlane32_swap_b32 v{M}, v{M+1}")
        e(f"v_max_f32 v{M}, v{M}, v{M+1}")
        e(f"v_mul_f32 v{NEG}, s{sNC}, v{M}")
        if a.pkfma:
            e(f"v_mov_b32 v{NEG+1}, s{sC}")
        def fma(i):
            if a.pkfma:
                e(f"v_pk_fma_f32 v[{2*i}:{2*i+1}], v[{2*i}:{2*i+1}], v[{NEG}:{NEG+1}], v[{NEG}:{NEG+1}] op_sel:[0,1,0] op_sel_hi:[1,1,0]")
            else:
                e(f"v_fma_f32 v{2*i}, v{2*i}, s{sC}, v{NEG}")
                e(f"v_fma_f32 v{2*i+1}, v{2*i+1}, s{sC}, v{NEG}")
        def ex(i):
            e(f"v_exp_f32 v{2*i}, v{2*i}")
            e(f"v_exp_f32 v{2*i+1}, v{2*i+1}")
        def fin(i):
            if i == 0:
                e(f"v_mov_b32 v{SUM}, v0")
                e(f"v_mov_b32 v{SUM+1}, v1")
            elif a.pkadd:
                e(f"v_pk_add_f32 v[{SUM}:{SUM+1}], v[{SUM}:{SUM+1}], v[{2*i}:{2*i+1}]")
            else:
                e(f"v_add_f32 v{SUM}, v{SUM}, v{2*i}")
                e(f"v_add_f32 v{SUM+1}, v{SUM+1}, v{2*i+1}")
            e(f"v_cvt_pk_bf16_f32 v{i}, v{2*i}, v{2*i+1}")
        fma(0); fma(1); ex(0)
        for i in range(64):
            if i + 2 < 64: fma(i + 2)
            if i + 1 < 64: ex(i + 1)
            else: e("s_nop 0")
            fin(i)
        e(f"v_add_f32 v{SUM}, v{SUM}, v{SUM+1}")
        e(f"v_mov_b32 v{SUM+1}, v{SUM}")
        e("s_nop 1")
        e(f"v_permlane32_swap_b32 v{SUM}, v{SUM+1}")
        e(f"v_add_f32 v{SUM}, v{SUM}, v{SUM+1}")
        e(f"v_rcp_f32 v{INV}, v{SUM}")
        return o

    def ochunk_list(self, cc):
        o = []
        b = otile(2 * cc)
        for i in range(4):
            if self.a.pkmul:
                for k in range(4):
                    r = b + 8 * i + 2 * k
                    o.append(f"v_pk_mul_f32 v[{r}:{r+1}], v[{r}:{r+1}], v[{INV}:{INV+1}] op_sel_hi:[1,0]")
            else:
                for k in range(8):
                    o.append(f"v_mul_f32 v{b+8*i+k}, v{b+8*i+k}, v{INV}")
            for k in range(4):
                o.append(f"v_cvt_pk_bf16_f32 v{b+4*i+k}, v{b+8*i+2*k}, v{b+8*i+2*k+1}")
        o += self.transp([b, b + 4, b + 8, b + 12], b + 16)
        return o
    def qt_list(self, cc):
        return self.transp([qslot(x) for x in QLD[cc]], qslot(QTMP[cc]))

    def vblock(self, lst, nparts, groups, barrier, nxt, tail):
        n = len(lst)
        cs = [0]
        for s in lst: cs.append(cs[-1] + (cost(s) if isinstance(s, str) else 0))
        lastpos = max(n - tail, 0)
        tot = cs[lastpos]
        cuts = []
        for p in range(1, nparts):
            cuts.append(min(i for i in range(n + 1) if cs[i] >= tot * p / nparts))
        cuts.append(lastpos)
        lo = 0
        ins = {}
        for p, hi in enumerate(cuts):
            g = groups[p]
            for k, grp in enumerate(g):
                ins.setdefault(lo + (k * (hi - lo)) // len(g), []).extend(grp)
            lo = hi
        for i in range(n + 1):
            if i in cuts:
                for p, cpos in enumerate(cuts):
                    if cpos == i:
                        barrier(p)
                        if p == nparts - 1 and nxt: self.preread(nxt)
            for x in ins.get(i, []): self.plain(x)
            if i < n: self.plain(lst[i])

    def group(self, name, lag):
        e, a = self.e, self.a
        phases = self.phases
        n = len(phases)
        p = self.p
        def dma_groups(g, pro):
            out = []
            for (t, ha) in self.issue[name].get(g % n, []):
                if pro:
                    out.append(self.dma_list(t, 0, 0)); assert ha == 0
                else:
                    rel = ha + (1 if g >= n else 0)
                    assert rel in (0, 1), (name, g, t, ha)
                    d = self.dma_list(t, rel, rel)
                    if g > n:
                        self.nlab += 1
                        d = [d[0], f"s_cbranch_scc1 L_nd{self.nlab}"] + d[2:] + [("LABEL", f"L_nd{self.nlab}")]
                    out.append(d)
            return out
        def end_interval(g, pro):
            self.trace(TR0)
            for (t, ha) in self.cert.get(g % n, []):
                self.wait_for(("T", t, ha if pro else ha + (1 if g >= n else 0)))
            e("s_waitcnt lgkmcnt(0)")
            if not pro and g >= n:
                self.nlab += 1
                e(f"s_cmp_eq_u32 s{sREM}, 1")
                e(f"s_cbranch_scc1 L_nb{self.nlab}")
                e("s_barrier")
                self.lab(f"L_nb{self.nlab}")
            else:
                e("s_barrier")
            self.trace(TR1, True)
        pt = self.pro_tiles[name]
        order = {"A": [0, "Q"] + pt[1:], "B": pt + ["Q"]}[name]
        for step in order:
            if step == "Q":
                e(f"s_add_u32 s{sT}, s{sCUR}, 6144")
                for k in range(12):
                    self.vm(*self.qload(k, sCUR, sT, 0))
            else:
                for x in self.dma_list(step, 0, 0): self.emit(x)
        self.setup2()
        self.wait_for(("T", 0, 0))
        e("s_barrier")
        for g in range(lag):
            for grp in dma_groups(g, True):
                for x in grp: self.emit(x)
            end_interval(g, True)
        self.preread("K")
        for cc in range(3):
            self.wait_for(("Q", cc, 0))
            for s in self.qt_list(cc): self.plain(s)
        p.inpro = False
        self.o.append(".p2align 6")
        self.lab(f"L_head{name}{self.sfx}")
        self.htrace()
        place = dict(x.split(":") for x in (a.placeA if name == "A" else a.placeB).split(","))
        qdist = dict(zip(phases, [int(x) for x in (a.qdistA if name == "A" else a.qdistB).split(",")]))
        assert sum(qdist.values()) == 12
        ql = [self.qload(k, sNXT, sNXT2, 1) for k in range(12)]
        qpre = [f"s_cmp_eq_u32 s{sREM}, 1", f"s_cselect_b32 s{SQ+2}, 0, s{SQ+2}"]
        units = {}
        for cc in range(3):
            units[f"O{cc}"] = self.ochunk_list(cc)
            units[f"T{cc}"] = [("WAIT", ("Q", cc, 1))] + self.qt_list(cc)
        wdist = dict(zip(phases, [int(x) for x in (a.wdistA if name == "A" else a.wdistB).split(",")]))
        assert sum(wdist.values()) == 12
        idx = {ph: i for i, ph in enumerate(phases)}
        e0 = idx["E0"]
        cyc = lambda ph: (idx[ph] - e0) % n
        wl = [(cc, j) for cc in range(3) for j in range(4)]
        wat = {}
        for ph in sorted(phases, key=cyc):
            wat[ph] = [wl.pop(0) for _ in range(wdist[ph])]
            for (cc, j) in wat[ph]:
                assert cyc(ph) > cyc(place[f"O{cc}"]), ("store before its chunk", ph, cc)
                lastok = ("K1", "K2", [x for x in phases if x[0] == "S"][-1])[cc]
                assert cyc(ph) <= cyc(lastok), ("store too late", ph, cc)
        mem, val = {}, {}
        for pi, ph in enumerate(phases):
            g = dma_groups(pi + lag, False)
            for k in range(qdist[ph]):
                g.append((qpre if len(ql) == 12 else []) + [ql.pop(0)])
            g += [[self.ostore(cc, j, -1 if ph[0] != "E" else 0)] for (cc, j) in wat[ph]]
            mem[ph] = g
            v = []
            for u in ("O0", "O1", "O2", "T0", "T1", "T2"):
                if place[u] == ph: v += units[u]
            val[ph] = v
        def msides(kind):
            sides = {}
            for tl in range(4):
                ph = f"{kind}{tl}"
                lo, hi = (24 * tl - 2 if tl else 0), 24 * tl + BARPOS - 1
                v = list(val[ph])
                if kind == "K" and a.maxk and tl >= 1:
                    v = v + self.max_list([2 * tl - 2, 2 * tl - 1], tl == 1)
                vlo = 24 * tl + 5 if (kind == "K" and a.maxk and tl >= 1 and not val[ph]) else lo
                for k, s in enumerate(v):
                    sides.setdefault(vlo + (k * (hi - vlo + 1)) // len(v), []).append(s)
                g = mem[ph]
                for k, grp in enumerate(g):
                    sides.setdefault(lo + (k * (hi - lo + 1)) // len(g), []).extend(grp)
            return sides
        nsm = sum(1 for x in phases if x[0] == "S")
        nem = sum(1 for x in phases if x[0] == "E")
        self.c(f"---- {name}: K block")
        if a.prio: e(f"s_setprio {a.prio}")
        self.mblock("K", msides("K"), lambda t: end_interval(idx[f"K{t}"] + lag, False))
        self.c(f"---- {name}: softmax")
        if a.prio: e("s_setprio 0")
        e("s_nop 7")
        e("s_nop 2")
        self.vblock(self.softmax_list(6 if a.maxk else 0), nsm, [mem[f"S{i}"] for i in range(nsm)],
                    lambda i: end_interval(idx[f"S{i}"] + lag, False), "V", a.tail)
        self.c(f"---- {name}: V block")
        self.htrace()
        if a.prio: e(f"s_setprio {a.prio}")
        self.mblock("V", msides("V"), lambda t: end_interval(idx[f"V{t}"] + lag, False))
        self.c(f"---- {name}: E")
        if a.prio: e("s_setprio 0")
        e(f"s_mov_b32 s{sPRV}, s{sCUR}")
        e(f"s_add_u32 s{sPRV2}, s{sCUR}, 6144")
        e(f"s_mov_b32 s{SO+2}, {0 if a.nostore else TENSOR_BYTES}")
        e("s_nop 3")
        for i in range(nem):
            last = i == nem - 1
            self.vblock(val[f"E{i}"], 1, [mem[f"E{i}"]], lambda _: end_interval(idx[f"E{i}"] + lag, False),
                        "K" if last else None, a.tail if last else 0)
        e(f"s_mov_b32 s{sCUR}, s{sNXT}")
        e(f"s_add_u32 s{sNXT}, s{sNXT}, {self.hstep}")
        e(f"s_add_u32 s{sNXT2}, s{sNXT}, 6144")
        e(f"s_sub_u32 s{sREM}, s{sREM}, 1")
        e(f"s_cmp_lg_u32 s{sREM}, 0")
        e(f"s_cbranch_scc1 L_head{name}{self.sfx}")
        self.c("---- last head: what the next head's K block would have done")
        done = [x for ph in phases if ph[0] == "E" for x in wat[ph]]
        for cc in range(3):
            if place[f"O{cc}"][0] != "E":
                for x in units[f"O{cc}"]: self.plain(x)
            for j in range(4):
                if (cc, j) not in done: e(self.ostore(cc, j, 0)[0])

    def check_schedule(self, name):
        n, lag = len(self.phases), self.a.lag
        rd = {int(ph[1]) + (4 if ph[0] == "V" else 0): i for i, ph in enumerate(self.phases) if ph[0] in "KV"}
        iss, cer = {}, {}
        for h in range(-1, 4):
            for g in range(n):
                for (t, ha) in self.issue[name].get(g, []): iss[8 * (h + ha) + t] = n * h + g
                for (t, ha) in self.cert.get(g, []): cer[8 * (h + ha) + t] = n * h + g
        order = sorted(iss, key=lambda x: (iss[x], x))
        assert order == sorted(order), "issue order must be stream order"
        for x in range(8, 24):
            h, t = divmod(x, 8)
            ra = n * h + rd[t]
            assert cer[x] < ra, ("cert", x)
            assert iss[x] <= cer[x], ("iss/cert", x)
            ho, to = divmod(x - NS, 8)
            assert iss[x] > n * ho + rd[to] + lag, ("slot", x, iss[x], n * ho + rd[to] + lag)
        self.pro_tiles[name] = [t for t in range(8) if iss[t] < 0]
        assert self.pro_tiles[name] == list(range(len(self.pro_tiles[name])))
        for t in range(1, 8):
            assert cer[t] >= 0, ("first-head cert", t)

    def schedule(self):
        a = self.a
        self.phases = a.phases.split(",")
        n = len(self.phases)
        rd = {int(ph[1]) + (4 if ph[0] == "V" else 0): i for i, ph in enumerate(self.phases) if ph[0] in "KV"}
        self.issue, self.cert, self.pro_tiles = {"A": {}, "B": {}}, {}, {}
        for name, dd in (("A", a.dist), ("B", a.distB or a.dist)):
            dist = [int(x) for x in dd.split(",")]
            for t in range(8):
                g = rd[t] - dist[t]
                self.issue[name].setdefault(g % n, []).append((t, 1 if g < 0 else 0))
            for g in self.issue[name]: self.issue[name][g].sort(key=lambda x: (x[1], x[0]))
        for t in range(8):
            g = rd[t] - 1
            self.cert.setdefault(g % n, []).append((t, 1 if g < 0 else 0))
        for name in "AB": self.check_schedule(name)

    def build(self, odd=None):
        e, a = self.e, self.a
        lds = NS * TILE
        self.o.append(HEADER + f"; @launch grid=(256,1,1) block=(512,1,1) lds={lds}")
        self.o.append('.amdgcn_target "amdgcn-amd-amdhsa--gfx950"')
        self.o.append(".text")
        self.o.append(f".globl {NAME}_kernel")
        self.o.append(".p2align 8")
        self.o.append(f".type {NAME}_kernel,@function")
        self.lab(f"{NAME}_kernel")
        self.p = Path()
        self.prologue()
        common = list(self.p.pro)
        paths = []
        variants = [("", a)] + ([("o", odd)] if odd else [])
        if odd:
            e(f"s_getreg_b32 s{sT}, hwreg(HW_REG_XCC_ID)")
            e(f"s_bitcmp1_b32 s{sT}, 0")
            e("s_cbranch_scc1 L_varo")
        for sfx, va in variants:
            self.a = va
            self.schedule()
            if sfx: self.lab("L_var" + sfx)
            e(f"s_cmp_ge_u32 s{sW}, 4")
            e(f"s_cbranch_scc1 L_grpB{sfx}")
            for name, lag in (("A", 0), ("B", va.lag)):
                if name == "B": self.lab("L_grpB" + sfx)
                self.p = Path(); self.p.pro = list(common)
                self.sfx = sfx
                self.group(name, lag)
                paths.append(self.p)
                if not (name == "B" and va is variants[-1][1]): e("s_branch L_fin")
        self.a = a
        self.lab("L_fin")
        if a.dbg:
            e("s_waitcnt vmcnt(0)")
            self.htrace()
            e(f"s_cmp_lg_u32 s{sW}, {a.dbg - 1}")
            e("s_cbranch_scc1 L_end")
            e("s_mov_b32 s60, s48")
            e("s_and_b32 s61, s49, 0xffff")
            e("s_mov_b32 s62, 256")
            e("s_mov_b32 s63, 0x20000")
            e("v_mbcnt_lo_u32_b32 v8, -1, 0")
            e("v_lshlrev_b32 v8, 2, v8")
            e(f"v_subrev_u32 v0, s50, v{TR0}")
            e("s_sub_u32 s68, s68, s52")
            e("s_lshr_b32 s68, s68, 4")
            e("v_writelane_b32 v0, s68, 9")
            e("s_not_b32 s50, s50")
            e("v_mov_b32 v1, s64")
            e("v_writelane_b32 v1, s50, 0")
            e("s_mov_b64 exec, 0x3ff")
            e("buffer_atomic_add v0, v8, s[60:63], 0 offen offset:8")
            e("s_mov_b64 exec, 3")
            e("buffer_atomic_umax v1, v8, s[60:63], 0 offen")
        if a.stamp:
            e("s_waitcnt vmcnt(0)")
            e("s_memrealtime s[54:55]")
            e("s_memtime s[56:57]")
            e("s_getreg_b32 s58, hwreg(HW_REG_XCC_ID)")
            e("s_getreg_b32 s67, hwreg(HW_REG_HW_ID)")
            e("s_waitcnt lgkmcnt(0)")
            e(f"s_lshl_b32 s59, s2, 3")
            e(f"s_add_u32 s59, s59, s{sW}")
            e(f"s_lshl_b32 s59, s59, 5")
            e("s_mov_b32 s60, s48")
            e("s_and_b32 s61, s49, 0xffff")
            e("s_mov_b32 s62, 65536")
            e("s_mov_b32 s63, 0x20000")
            for k, r in enumerate((50, 51, 54, 55, 52, 56, 58, 67)):
                e(f"v_mov_b32 v{k}, s{r}")
            e("v_mov_b32 v8, 0")
            e("s_mov_b64 exec, 1")
            e("buffer_store_dwordx4 v[0:3], v8, s[60:63], s59 offen")
            e("buffer_store_dwordx4 v[4:7], v8, s[60:63], s59 offen offset:16")
            if a.trace or a.htrace or a.rtrace:
                e("s_mov_b64 exec, -1")
                e("s_mov_b32 s62, 0x1000000")
                e("v_mbcnt_lo_u32_b32 v8, -1, 0")
                e("v_mbcnt_hi_u32_b32 v8, -1, v8")
                e("v_lshlrev_b32 v8, 2, v8")
                e("s_lshl_b32 s59, s59, 4")
                e("s_add_u32 s59, s59, 65536")
                e(f"buffer_store_dword v{TR0}, v8, s[60:63], s59 offen")
                e(f"buffer_store_dword v{TR1}, v8, s[60:63], s59 offen offset:256")
        e("s_waitcnt vmcnt(0)")
        self.lab("L_end")
        e("s_endpgm")
        for p in paths: self.resolve_waits(p)
        self.o.append(f""".section .rodata,"a"
.p2align 6
.amdhsa_kernel {NAME}_kernel
  .amdhsa_next_free_vgpr {NV}
  .amdhsa_next_free_sgpr 72
  .amdhsa_accum_offset {NV}
  .amdhsa_group_segment_fixed_size 0
  .amdhsa_kernarg_size 48
  .amdhsa_user_sgpr_count 2
  .amdhsa_user_sgpr_kernarg_segment_ptr 1
  .amdhsa_system_sgpr_workgroup_id_x 1
.end_amdhsa_kernel
""")
        return "\n".join(self.o)

    def resolve_waits(self, p):
        for (idx, tag, inpro, pos) in p.waits:
            c = []
            if inpro:
                seq = p.pro[:pos]
                last = max(i for i, t in enumerate(seq) if t == tag)
                c.append(len(seq) - 1 - last)
            else:
                for it in range(NH):
                    seq = list(p.pro)
                    for j in range(it + 1):
                        b = p.body if j < it else p.body[:pos]
                        seq += [(k, x, h + j) for (k, x, h) in b]
                    want = (tag[0], tag[1], tag[2] + it)
                    last = max(i for i, t in enumerate(seq) if t == want)
                    c.append(len(seq) - 1 - last)
            nn = min(c)
            assert nn <= 63
            self.o[idx] = f"    s_waitcnt vmcnt({nn})"

if __name__ == "__main__":
    ap = argparse.ArgumentParser()
    ap.add_argument("-o", default=f"cdna_kernels/{NAME}.s")
    ap.add_argument("--ld", default="nt")
    ap.add_argument("--ldq", default=None)
    ap.add_argument("--st", default="")
    ap.add_argument("--win", type=int, default=0)
    ap.add_argument("--dbg", type=int, default=0)
    ap.add_argument("--xor", type=int, default=0)
    ap.add_argument("--hmul", type=int, default=1)
    ap.add_argument("--hstep", type=int, default=256)
    ap.add_argument("--lag", type=int, default=4)
    ap.add_argument("--prio", type=int, default=0)
    ap.add_argument("--tail", type=int, default=24)
    ap.add_argument("--phases", default="K0,K1,K2,K3,S0,S1,S2,S3,V0,V1,V2,V3,E0,E1,E2,E3")
    ap.add_argument("--dist", default="7,6,5,4,7,6,5,4")
    ap.add_argument("--distB", default="6,5,4,3,6,5,4,3")
    ap.add_argument("--wdistA", default="3,0,0,0,0,0,0,0,0,0,0,0,0,3,3,3")
    ap.add_argument("--wdistB", default="3,0,0,0,0,0,0,0,0,0,0,0,0,3,3,3")
    ap.add_argument("--qdistA", default="0,0,0,0,0,3,3,3,3,0,0,0,0,0,0,0")
    ap.add_argument("--qdistB", default="0,0,0,0,0,3,3,3,3,0,0,0,0,0,0,0")
    ap.add_argument("--placeA", default="O0:E0,O1:E1,O2:E2,T0:E3,T1:E3,T2:E3")
    ap.add_argument("--placeB", default="O0:E0,O1:E1,O2:E2,T0:E3,T1:E3,T2:E3")
    for k in ("nocompute", "nostore", "stamp", "noload", "trace", "htrace", "rtrace", "pkfma", "pkadd", "pkmul", "maxk"):
        ap.add_argument("--" + k, action="store_true")
    ap.add_argument("--odd", default=None)
    a = ap.parse_args()
    if a.dbg: a.htrace = True
    odd = None
    if a.odd is not None:
        odd = ap.parse_args(sys.argv[1:] + a.odd.split())
    open(a.o, "w").write(G(a).build(odd))
```

```python
import struct, math, sys, argparse

NAME = "standalone__mha_softmax__near_ridge"
HEAD_BYTES = 256 * 384
TENSOR_BYTES = 1024 * HEAD_BYTES
TILE = 64 * 384
NS = 6
NH = 4
DEPTH = 6
BARPOS = 20

def f32hex(x):
    return "0x%08x" % struct.unpack("<I", struct.pack("<f", x))[0]

HEADER = """; Kernarg layout for this problem (48 bytes, ptrs only, base s[0:1]):
"""

S0 = 0
QR = 128
XR = 180
FB = 212
TR0, TR1 = 236, 237
MX = 238
VD = 244
VA0 = 247
VB0 = 248
VC = 249
VQO = 253
INV = 254
NV = 256

SQ, SK, SV, SO = 12, 16, 20, 24
sW, sW3, sCUR, sNXT, sPROD, sCONS, sREM, sC, sNC, sT, sNXT2, sPRV, sPRV2, sPLIM = range(32, 46)

def otile(t):
    return 64 + 16 * t if t < 4 else XR + 16 * (t - 4)
def qslot(n):
    return QR + 4 * n
QLD = [[1 + 4 * cc + j for j in range(4)] for cc in range(3)]
QTMP = [0, 3, 7]
QFIN = [[QTMP[cc], QLD[cc][1], QLD[cc][0], QLD[cc][3]] for cc in range(3)]
def qfrag(s):
    return qslot(QFIN[s // 4][s % 4])

def cost(s):
    return 2 if s.startswith("v_exp") or s.startswith("v_rcp") else 1

class Path:
    def __init__(self):
        self.pro, self.body, self.waits, self.inpro = [], [], [], True

class G:
    def __init__(self, a):
        self.a = a
        fl = lambda s: "".join(" " + x for x in s.split(",") if x)
        self.ld, self.st, self.ldq = fl(a.ld), fl(a.st), fl(a.ldq if a.ldq is not None else a.ld)
        self.o = []
        self.nlab = 0
        self.common = []
        self.p = None
    def e(self, s):
        self.o.append("    " + s)
    def lab(self, s):
        self.o.append(s + ":")
    def c(self, s):
        self.o.append("    ; " + s)
    def vm(self, s, tag):
        if self.a.win and not self.p.inpro:
            self.e(f"s_waitcnt vmcnt({self.a.win - 1})")
        self.e(s)
        (self.p.pro if self.p.inpro else self.p.body).append(tag)
    def emit(self, x):
        if isinstance(x, tuple): self.vm(*x)
        else: self.e(x)
    def wait_for(self, tag):
        self.o.append(None)
        p = self.p
        p.waits.append((len(self.o) - 1, tag, p.inpro, len(p.pro) if p.inpro else len(p.body)))

    def trace(self, vreg, inc=False):
        if self.a.rtrace and inc:
            self.a.htrace = True; self.htrace(); self.a.htrace = False
        if not self.a.trace:
            return
        e = self.e
        e("s_memtime s[64:65]")
        e("s_mov_b32 m0, s66")
        e("s_waitcnt lgkmcnt(0)")
        e(f"v_writelane_b32 v{vreg}, s64, m0")
        if inc:
            e("s_add_u32 s66, s66, 1")

    def htrace(self):
        if not self.a.htrace:
            return
        e = self.e
        e("s_memrealtime s[64:65]")
        e("s_memtime s[68:69]")
        e("s_mov_b32 m0, s66")
        e("s_waitcnt lgkmcnt(0)")
        e(f"v_writelane_b32 v{TR0}, s64, m0")
        e(f"v_writelane_b32 v{TR1}, s68, m0")
        e("s_add_u32 s66, s66, 1")

    def dma_list(self, t, rel, hd):
        srd = SK if t < 4 else SV
        headreg = sNXT if rel else sCUR
        off = (t % 4) * TILE
        o = []
        if rel:
            o += [f"s_cmp_eq_u32 s{sREM}, 1", f"s_cselect_b32 s{srd+2}, 0, s{srd+2}"]
        o.append(f"s_mov_b32 m0, s{sPROD}")
        if off:
            o.append(f"s_add_u32 s{sT}, s{headreg}, {off}")
            so = sT
        else:
            o.append("s_nop 0")
            so = headreg
        for i in range(3):
            of = f" offset:{1024*i}" if i else ""
            o.append((f"buffer_load_dwordx4 v{VD+i}, s[{srd}:{srd+3}], s{so} offen{of}{self.ld} lds", ("T", t, hd)))
        o += [f"s_add_u32 s{sPROD}, s{sPROD}, {TILE}",
              f"s_cmp_eq_u32 s{sPROD}, s{sPLIM}",
              f"s_cselect_b32 s{sPROD}, s{sW3}, s{sPROD}"]
        return o
    def qload(self, k, h0, h1, hd):
        cc, j = k // 4, k % 4
        r = qslot(QLD[cc][j])
        so = h1 if j >= 2 else h0
        off = (j & 1) * 3072 + 128 * cc
        o = f" offset:{off}" if off else ""
        return (f"buffer_load_dwordx4 v[{r}:{r+3}], v{VQO}, s[{SQ}:{SQ+3}], s{so} offen{o}{self.ldq}", ("Q", cc, hd))
    def oregs(self, cc):
        b = otile(2 * cc)
        return [b + 16, b + 4, b + 0, b + 12]
    def ostore(self, cc, j, hd):
        r = self.oregs(cc)[j]
        so = sPRV2 if j >= 2 else sPRV
        off = (j & 1) * 3072 + 128 * cc
        o = f" offset:{off}" if off else ""
        return (f"buffer_store_dwordx4 v[{r}:{r+3}], v{VQO}, s[{SO}:{SO+3}], s{so} offen{o}{self.st}", ("O", cc, hd))

    def transp(self, L, T):
        out = []
        for (a, b, d) in ((L[0], L[1], T), (L[2], L[3], L[0])):
            for k in range(4):
                out.append(f"v_cndmask_b32_dpp v{d+k}, v{b+k}, v{a+k}, vcc row_ror:8 row_mask:0xf bank_mask:0xf")
            for k in range(4):
                out.append(f"v_mov_b32_dpp v{b+k}, v{a+k} row_ror:8 row_mask:0xf bank_mask:0x3")
        F = [T, L[1], L[0], L[3]]
        for (a, b) in ((F[0], F[2]), (F[1], F[3])):
            for k in range(4):
                out.append(f"v_permlane16_swap_b32 v{a+k}, v{b+k}")
        return out

    def adv_cons(self):
        e = self.e
        e(f"s_add_u32 s{sCONS}, s{sCONS}, {TILE}")
        e(f"s_cmp_eq_u32 s{sCONS}, {NS*TILE}")
        e(f"s_cselect_b32 s{sCONS}, 0, s{sCONS}")

    def prologue(self):
        e, a = self.e, self.a
        e("s_cmp_ge_u32 s2, 256")
        e("s_cbranch_scc1 L_end")
        if a.stamp or a.dbg:
            e("s_memrealtime s[50:51]")
            e("s_memtime s[52:53]")
            e(f"s_load_dwordx2 s[48:49], s[0:1], {32 if a.dbg else 40}")
            e("s_mov_b32 s66, 0")
        e("s_load_dwordx8 s[4:11], s[0:1], 0")
        e("v_and_b32 v1, 63, v0                 ; lane")
        e("v_lshrrev_b32 v2, 6, v0              ; wave")
        e("v_lshrrev_b32 v3, 3, v1              ; lane/8")
        e(f"v_readfirstlane_b32 s{sW}, v2")
        e("v_and_b32 v4, 7, v1                  ; lane%8")
        e("v_and_b32 v5, 1, v2")
        e("v_lshlrev_b32 v5, 1, v5              ; (w&1)<<1")
        e("v_mul_u32_u24 v6, 3072, v2           ; w*3072")
        e("v_lshl_add_u32 v6, v3, 7, v6         ; + (lane/8)*128")
        for i in range(3):
            e(f"v_add_u32 v7, {8*i}, v3")
            e("v_mul_u32_u24 v7, 11, v7")
            e("v_lshrrev_b32 v7, 5, v7")
            e("v_bfe_u32 v8, v7, 1, 1")
            e("v_lshlrev_b32 v8, 2, v8")
            e("v_bfe_u32 v9, v7, 2, 1")
            e("v_or3_b32 v8, v8, v9, v5             ; f(row)")
            e("v_xor_b32 v8, v8, v4")
            e(f"v_lshl_add_u32 v{VD+i}, v8, 4, v6")
        e("v_lshrrev_b32 v8, 5, v1              ; h")
        e("v_lshl_add_u32 v11, v2, 5, v4")
        e("v_mul_u32_u24 v11, 384, v11")
        e("v_and_b32 v12, 3, v3")
        e("v_lshl_add_u32 v11, v12, 5, v11")
        e(f"v_lshl_add_u32 v{VQO}, v8, 4, v11   ; (32w + lane%8)*384 + 32*((lane>>3)&3) + 16h")
        e(f"s_mul_i32 s{sW3}, s{sW}, 3072")
        e(f"s_mov_b32 s{sPROD}, s{sW3}")
        e(f"s_add_u32 s{sPLIM}, s{sW3}, {NS*TILE}")
        if a.xor:
            e(f"s_xor_b32 s2, s2, {a.xor}")
        e(f"s_mul_i32 s{sCUR}, s2, {HEAD_BYTES * a.hmul}")
        self.hstep = a.hstep * HEAD_BYTES
        e("s_waitcnt lgkmcnt(0)")
        for srd, p, n in ((SQ, 4, TENSOR_BYTES), (SK, 6, TENSOR_BYTES), (SV, 8, TENSOR_BYTES), (SO, 10, 0)):
            if a.noload and srd != SO:
                n = 0
            e(f"s_mov_b32 s{srd}, s{p}")
            e(f"s_and_b32 s{srd+1}, s{p+1}, 0xffff")
            e(f"s_mov_b32 s{srd+2}, {n}")
            e(f"s_mov_b32 s{srd+3}, 0x20000")

    def setup2(self):
        e = self.e
        e("v_and_b32 v7, 31, v1                 ; m")
        e("v_bfe_u32 v9, v7, 1, 1")
        e("v_lshlrev_b32 v9, 2, v9")
        e("v_bfe_u32 v10, v7, 2, 2")
        e("v_or_b32 v9, v9, v10                 ; f(m)")
        e("v_xor_b32 v9, v9, v8                 ; f(m)^h")
        e("v_mul_u32_u24 v10, 384, v7           ; m*384")
        e(f"v_lshl_add_u32 v{VA0}, v9, 4, v10")
        e("v_bfe_u32 v9, v1, 2, 2               ; r")
        e("v_lshl_add_u32 v10, v8, 2, v9        ; 4h+r")
        e("v_mul_u32_u24 v10, 384, v10")
        e("v_bfe_u32 v11, v1, 1, 1              ; cc>>1")
        e("v_lshl_add_u32 v10, v11, 3, v10      ; base")
        e("v_bfe_u32 v11, v1, 3, 1              ; r>>1")
        e("v_lshlrev_b32 v11, 2, v11")
        e("v_bfe_u32 v12, v1, 4, 1              ; up")
        e("v_lshlrev_b32 v12, 1, v12")
        e("v_and_b32 v13, 1, v1")
        e("v_xor_b32 v13, v13, v8               ; (cc&1)^h")
        e("v_or3_b32 v11, v11, v12, v13         ; x")
        e(f"v_lshl_add_u32 v{VB0}, v11, 4, v10")
        e(f"s_mov_b32 s{sCONS}, 0")
        e(f"s_mov_b32 s{sREM}, {NH}")
        c = 192 ** -0.5 * math.log2(math.e)
        e(f"s_mov_b32 s{sC}, {f32hex(c)}")
        e(f"s_mov_b32 s{sNC}, {f32hex(-c)}")
        e(f"s_add_u32 s{sNXT}, s{sCUR}, {self.hstep}")
        e(f"s_add_u32 s{sNXT2}, s{sNXT}, 6144")
        e(f"s_mov_b32 s{sPRV}, s{sCUR}")
        e(f"s_mov_b32 s{sPRV2}, s{sCUR}")
        e("s_mov_b32 vcc_lo, 0x00ff00ff")
        e("s_mov_b32 vcc_hi, 0x00ff00ff")

    def addr_calc(self, kind):
        base = VA0 if kind == "K" else VB0
        o = [f"v_add_u32 v{VC}, s{sCONS}, v{base}"]
        o += [f"v_xor_b32 v{VC+u}, {u<<5}, v{VC}" for u in range(1, 4)]
        o += [f"s_add_u32 s{sCONS}, s{sCONS}, {TILE}",
              f"s_cmp_eq_u32 s{sCONS}, {NS*TILE}",
              f"s_cselect_b32 s{sCONS}, 0, s{sCONS}"]
        return o
    def kord(self, jj):
        return (jj % 12, jj // 12) if self.a.kchain else (jj // 2, jj % 2)
    def vord(self, jj):
        if self.a.vchain == 4: return (jj % 4, jj // 4)
        if self.a.vchain == 2: return (2 * (jj // 12) + jj % 2, (jj % 12) // 2)
        return (jj // 6, jj % 6)
    def item_reads(self, kind, j):
        r = self.item_reads0(kind, j)
        if self.a.dupread and j % self.a.dupread == 0:
            r = [x.replace(f"v[{FB + 4 * (j % DEPTH)}:", f"v[{TR0 - 2}:").replace(f":{FB + 4 * (j % DEPTH) + 3}]", f":{TR0 + 1}]") for x in r[:0]] + r
        return r
    def item_reads0(self, kind, j):
        b = FB + 4 * (j % DEPTH)
        jj = j % 24
        if kind == "K":
            s, st = self.kord(jj)
            return [f"ds_read_b128 v[{b}:{b+3}], v{VC+s%4} offset:{st*12288+128*(s//4)}"]
        ks, t = self.vord(jj)
        off = ks * 6144 + (t // 2) * 128
        return [f"ds_read_b64_tr_b16 v[{b}:{b+1}], v{VC+2*(t%2)} offset:{off}",
                f"ds_read_b64_tr_b16 v[{b+2}:{b+3}], v{VC+2*(t%2)+1} offset:{off+3072}"]
    def item_mfma(self, kind, j):
        b = FB + 4 * (j % DEPTH)
        tl, jj = j // 24, j % 24
        if kind == "K":
            s, st = self.kord(jj)
            D = S0 + 16 * (2 * tl + st)
            C = "0" if s == 0 else f"v[{D}:{D+15}]"
            q = qfrag(s)
            return f"v_mfma_f32_32x32x16_bf16 v[{D}:{D+15}], v[{b}:{b+3}], v[{q}:{q+3}], {C}"
        ks, t = self.vord(jj)
        D = otile(t)
        P = 8 * (2 * tl + ks // 2) + 4 * (ks % 2)
        C = "0" if (tl == 0 and ks == 0) else f"v[{D}:{D+15}]"
        return f"v_mfma_f32_32x32x16_bf16 v[{D}:{D+15}], v[{b}:{b+3}], v[{P}:{P+3}], {C}"

    def plain(self, x):
        if isinstance(x, tuple):
            if x[0] == "WAIT": self.wait_for(x[1])
            elif x[0] == "LABEL": self.lab(x[1])
            else: self.vm(*x)
        elif self.a.nocompute and x.startswith(("v_", "ds_")):
            pass
        elif self.a.nomfma and x.startswith("v_mfma"):
            self.e("s_nop 15"); self.e("s_nop 15")
        elif self.a.nosm and x.startswith(("v_exp", "v_fma", "v_add_f32", "v_max3")):
            pass
        elif self.a.nolds and x.startswith("ds_read") and not self.p.inpro:
            pass
        else:
            self.e(x)

    def preread(self, kind):
        for x in self.addr_calc(kind): self.plain(x)
        for j in range(DEPTH):
            for r in self.item_reads(kind, j): self.plain(r)

    def mblock(self, kind, sides, barrier):
        rpf = 1 if kind == "K" else 2
        pend = list(range(DEPTH))
        def req(j):
            for r in self.item_reads(kind, j): self.plain(r)
            pend.append(j)
        for j in range(96):
            tl, jj = j // 24, j % 24
            if j in pend:
                k = pend.index(j)
                if not self.a.nocompute:
                    self.e(f"s_waitcnt lgkmcnt({(len(pend) - k - 1) * rpf})")
                del pend[:k + 1]
            self.plain(self.item_mfma(kind, j))
            if jj + DEPTH < 24:
                req(j + DEPTH)
            elif jj == 24 - DEPTH and tl < 3:
                for x in self.addr_calc(kind): self.plain(x)
            if jj == BARPOS:
                barrier(tl)
                pend.clear()
                if tl < 3:
                    for k in range(BARPOS + DEPTH - 23): req(24 * (tl + 1) + k)
            elif jj > BARPOS and tl < 3:
                req(j + DEPTH)
            for x in sides.get(j, []):
                self.plain(x)

    def max_list(self, tiles, first):
        o = []
        vals = [16 * t + i for t in tiles for i in range(16)]
        k = 0
        if first:
            o.append(f"v_max_f32 v{MX}, v{vals[0]}, v{vals[1]}")
            o.append(f"v_max_f32 v{MX+1}, v{vals[2]}, v{vals[3]}")
            k = 4
        ch = 0
        while k < len(vals):
            o.append(f"v_max3_f32 v{MX+ch}, v{MX+ch}, v{vals[k]}, v{vals[k+1]}")
            ch ^= 1
            k += 2
        return o

    def softmax_list(self, maxdone):
        a = self.a
        o = []
        e = o.append
        M, NEG, SUM = MX, MX + 2, MX + 4
        o += self.max_list(list(range(maxdone, 8)), maxdone == 0)
        e(f"v_max_f32 v{M}, v{M}, v{M+1}")
        e(f"v_mov_b32 v{M+1}, v{M}")
        e("s_nop 1")
        e(f"v_permlane32_swap_b32 v{M}, v{M+1}")
        e(f"v_max_f32 v{M}, v{M}, v{M+1}")
        e(f"v_mul_f32 v{NEG}, s{sNC}, v{M}")
        if a.pkfma:
            e(f"v_mov_b32 v{NEG+1}, s{sC}")
        def fma(i):
            if a.pkfma:
                e(f"v_pk_fma_f32 v[{2*i}:{2*i+1}], v[{2*i}:{2*i+1}], v[{NEG}:{NEG+1}], v[{NEG}:{NEG+1}] op_sel:[0,1,0] op_sel_hi:[1,1,0]")
            else:
                e(f"v_fma_f32 v{2*i}, v{2*i}, s{sC}, v{NEG}")
                e(f"v_fma_f32 v{2*i+1}, v{2*i+1}, s{sC}, v{NEG}")
        def ex(i):
            e(f"v_exp_f32 v{2*i}, v{2*i}")
            e(f"v_exp_f32 v{2*i+1}, v{2*i+1}")
        def fin(i):
            if i == 0:
                e(f"v_mov_b32 v{SUM}, v0")
                e(f"v_mov_b32 v{SUM+1}, v1")
            elif a.pkadd:
                e(f"v_pk_add_f32 v[{SUM}:{SUM+1}], v[{SUM}:{SUM+1}], v[{2*i}:{2*i+1}]")
            else:
                e(f"v_add_f32 v{SUM}, v{SUM}, v{2*i}")
                e(f"v_add_f32 v{SUM+1}, v{SUM+1}, v{2*i+1}")
            e(f"v_cvt_pk_bf16_f32 v{i}, v{2*i}, v{2*i+1}")
        fma(0); fma(1); ex(0)
        for i in range(64):
            if i + 2 < 64: fma(i + 2)
            if i + 1 < 64: ex(i + 1)
            else: e("s_nop 0")
            fin(i)
        e(f"v_add_f32 v{SUM}, v{SUM}, v{SUM+1}")
        e(f"v_mov_b32 v{SUM+1}, v{SUM}")
        e("s_nop 1")
        e(f"v_permlane32_swap_b32 v{SUM}, v{SUM+1}")
        e(f"v_add_f32 v{SUM}, v{SUM}, v{SUM+1}")
        e(f"v_rcp_f32 v{INV}, v{SUM}")
        return o

    def ochunk_list(self, cc):
        o = []
        b = otile(2 * cc)
        for i in range(4):
            if self.a.pkmul:
                for k in range(4):
                    r = b + 8 * i + 2 * k
                    o.append(f"v_pk_mul_f32 v[{r}:{r+1}], v[{r}:{r+1}], v[{INV}:{INV+1}] op_sel_hi:[1,0]")
            else:
                for k in range(8):
                    o.append(f"v_mul_f32 v{b+8*i+k}, v{b+8*i+k}, v{INV}")
            for k in range(4):
                o.append(f"v_cvt_pk_bf16_f32 v{b+4*i+k}, v{b+8*i+2*k}, v{b+8*i+2*k+1}")
        o += self.transp([b, b + 4, b + 8, b + 12], b + 16)
        return o
    def qt_list(self, cc):
        return self.transp([qslot(x) for x in QLD[cc]], qslot(QTMP[cc]))

    def vblock(self, lst, nparts, groups, barrier, nxt, tail):
        n = len(lst)
        cs = [0]
        for s in lst: cs.append(cs[-1] + (cost(s) if isinstance(s, str) else 0))
        lastpos = max(n - tail, 0)
        tot = cs[lastpos]
        cuts = []
        for p in range(1, nparts):
            cuts.append(min(i for i in range(n + 1) if cs[i] >= tot * p / nparts))
        cuts.append(lastpos)
        lo = 0
        ins = {}
        for p, hi in enumerate(cuts):
            g = groups[p]
            for k, grp in enumerate(g):
                ins.setdefault(lo + int(k * (hi - lo) * self.a.front) // len(g), []).extend(grp)
            lo = hi
        for i in range(n + 1):
            if i in cuts:
                for p, cpos in enumerate(cuts):
                    if cpos == i:
                        barrier(p)
                        if p == nparts - 1 and nxt: self.preread(nxt)
            for x in ins.get(i, []): self.plain(x)
            if i < n: self.plain(lst[i])

    def group(self, name, lag):
        e, a = self.e, self.a
        phases = self.phases
        n = len(phases)
        p = self.p
        def dma_groups(g, pro):
            out = []
            for (t, ha) in self.issue[name].get(g % n, []):
                if pro:
                    out.append(self.dma_list(t, 0, 0)); assert ha == 0
                else:
                    rel = ha + (1 if g >= n else 0)
                    assert rel in (0, 1), (name, g, t, ha)
                    d = self.dma_list(t, rel, rel)
                    if g > n:
                        self.nlab += 1
                        d = [d[0], f"s_cbranch_scc1 L_nd{self.nlab}"] + d[2:] + [("LABEL", f"L_nd{self.nlab}")]
                    out.append(d)
            return out
        def end_interval(g, pro):
            self.trace(TR0)
            for (t, ha) in self.cert.get(g % n, []):
                self.wait_for(("T", t, ha if pro else ha + (1 if g >= n else 0)))
            if a.pace >= 0 and a.pacelo <= g <= a.pacehi:
                if pro:
                    e(f"s_waitcnt vmcnt({a.pace})")
                else:
                    self.nlab += 1
                    e(f"s_cmp_lg_u32 s{sREM}, {NH}")
                    e(f"s_cbranch_scc1 L_np{self.nlab}")
                    e(f"s_waitcnt vmcnt({a.pace})")
                    self.lab(f"L_np{self.nlab}")
            e("s_waitcnt lgkmcnt(0)")
            if not pro and g >= n:
                self.nlab += 1
                e(f"s_cmp_eq_u32 s{sREM}, 1")
                e(f"s_cbranch_scc1 L_nb{self.nlab}")
                e("s_barrier")
                self.lab(f"L_nb{self.nlab}")
            else:
                e("s_barrier")
            self.trace(TR1, True)
        pt = self.pro_tiles[name]
        qa = a.qatA if name == "A" else a.qatB
        order = pt[:qa] + ["Q"] + pt[qa:]
        es = [x.split(",") if x else [] for x in a.es.split(";")] if a.es else None
        if es:
            order = [0, "Q"] if name == "A" else [0]
        for step in order:
            if step == "Q":
                e(f"s_add_u32 s{sT}, s{sCUR}, 6144")
                for k in range(12):
                    self.vm(*self.qload(k, sCUR, sT, 0))
            else:
                for x in self.dma_list(step, 0, 0): self.emit(x)
        if es and name == "A":
            e(f"s_add_u32 s{sPROD}, s{sPROD}, {TILE * (len(pt) - 1)}")
        self.setup2()
        if es and name == "B":
            e(f"s_add_u32 s{sPRV2}, s{sCUR}, 6144")
        self.wait_for(("T", 0, 0))
        e("s_barrier")
        qn, tdone = 0, []
        pf = [int(x) for x in a.pf.split(",")] if (a.pf and lag) else []
        if pf:
            e("v_lshlrev_b32 v14, 4, v1")
        done = 0
        for g in range(lag):
            for tok in (es[g] if es else []):
                if tok[0] == "K":
                    t = int(tok[1])
                    if t in self.pro_tiles["A"]:
                        e(f"s_sub_u32 m0, s{sPROD}, 12288")
                        e(f"s_add_u32 s{sT}, s{sCUR}, {t * TILE - 12288}")
                        for i in range(3):
                            of = f" offset:{1024*i}" if i else ""
                            self.vm(f"buffer_load_dwordx4 v{VD+i}, s[{SK}:{SK+3}], s{sT} offen{of}{self.ld} lds", ("T", t, 0))
                    for x in self.dma_list(t, 0, 0): self.emit(x)
                elif tok[0] == "Q":
                    for k in range(int(tok[1:])):
                        self.vm(*self.qload(qn, sCUR, sPRV2, 0)); qn += 1
            for grp, (t, _) in zip(dma_groups(g, True), self.issue[name].get(g % n, [])):
                if es and t <= 3: continue
                for x in grp: self.emit(x)
            for tok in (es[g] if es else []):
                if tok[0] == "T":
                    cc = int(tok[1]); tdone.append(cc)
                    self.wait_for(("Q", cc, 0))
                    for x in self.qt_list(cc): self.plain(x)
            if pf and pf[g]:
                srd = {"Q": SQ, "K": SK, "V": SV}[a.pfsrc]
                e(f"s_sub_u32 s{sT}, s{sW}, 4")
                e(f"s_mul_i32 s{sT}, s{sT}, {1024 * pf[g]}")
                e(f"s_add_u32 s{sT}, s{sT}, s{sNXT}")
                if done: e(f"s_add_u32 s{sT}, s{sT}, {done}")
                fl = "".join(" " + x for x in a.pfld.split(",") if x)
                for k in range(pf[g]):
                    if k == 4: e(f"s_add_u32 s{sT}, s{sT}, 4096")
                    of = f" offset:{1024 * (k % 4)}" if k % 4 else ""
                    self.vm(f"buffer_load_dwordx4 v[{XR}:{XR+3}], v14, s[{srd}:{srd+3}], s{sT} offen{of}{fl}", ("P", g, 0))
                done += 4 * 1024 * pf[g]
                assert done <= HEAD_BYTES and pf[g] <= 8
            end_interval(g, True)
        assert not (es and lag) or qn == 12
        self.preread("K")
        for cc in range(3):
            if cc in tdone: continue
            self.wait_for(("Q", cc, 0))
            for s in self.qt_list(cc): self.plain(s)
        p.inpro = False
        self.o.append(".p2align 6")
        self.lab(f"L_head{name}{self.sfx}")
        self.htrace()
        place = dict(x.split(":") for x in (a.placeA if name == "A" else a.placeB).split(","))
        qdist = dict(zip(phases, [int(x) for x in (a.qdistA if name == "A" else a.qdistB).split(",")]))
        assert sum(qdist.values()) == 12
        ql = [self.qload(k, sNXT, sNXT2, 1) for k in range(12)]
        qpre = [f"s_cmp_eq_u32 s{sREM}, 1", f"s_cselect_b32 s{SQ+2}, 0, s{SQ+2}"]
        units = {}
        for cc in range(3):
            units[f"O{cc}"] = self.ochunk_list(cc)
            units[f"T{cc}"] = [("WAIT", ("Q", cc, 1))] + self.qt_list(cc)
        wdist = dict(zip(phases, [int(x) for x in (a.wdistA if name == "A" else a.wdistB).split(",")]))
        assert sum(wdist.values()) == 12
        idx = {ph: i for i, ph in enumerate(phases)}
        e0 = idx["E0"]
        cyc = lambda ph: (idx[ph] - e0) % n
        wl = [(cc, j) for cc in range(3) for j in range(4)]
        wat = {}
        for ph in sorted(phases, key=cyc):
            wat[ph] = [wl.pop(0) for _ in range(wdist[ph])]
            for (cc, j) in wat[ph]:
                assert cyc(ph) > cyc(place[f"O{cc}"]), ("store before its chunk", ph, cc)
                lastok = ("K1", "K2", [x for x in phases if x[0] == "S"][-1])[cc]
                assert cyc(ph) <= cyc(lastok), ("store too late", ph, cc)
        mem, val = {}, {}
        for pi, ph in enumerate(phases):
            g = dma_groups(pi + lag, False)
            for k in range(qdist[ph]):
                g.append((qpre if len(ql) == 12 else []) + [ql.pop(0)])
            g += [[self.ostore(cc, j, -1 if ph[0] != "E" else 0)] for (cc, j) in wat[ph]]
            mem[ph] = g
            v = []
            for u in ("O0", "O1", "O2", "T0", "T1", "T2"):
                if place[u] == ph: v += units[u]
            val[ph] = v
        def msides(kind):
            sides = {}
            for tl in range(4):
                ph = f"{kind}{tl}"
                lo, hi = (24 * tl - 2 if tl else 0), 24 * tl + BARPOS - 1
                v = list(val[ph])
                if kind == "K" and a.maxk and tl >= 1:
                    v = v + self.max_list([2 * tl - 2, 2 * tl - 1], tl == 1)
                vlo = 24 * tl + 5 if (kind == "K" and a.maxk and tl >= 1 and not val[ph]) else lo
                for k, s in enumerate(v):
                    sides.setdefault(vlo + (k * (hi - vlo + 1)) // len(v), []).append(s)
                g = mem[ph]
                for k, grp in enumerate(g):
                    sides.setdefault(lo + int(k * (hi - lo + 1) * a.front) // len(g), []).extend(grp)
            return sides
        nsm = sum(1 for x in phases if x[0] == "S")
        nem = sum(1 for x in phases if x[0] == "E")
        self.c(f"---- {name}: K block")
        if a.prio: e(f"s_setprio {a.prio}")
        self.mblock("K", msides("K"), lambda t: end_interval(idx[f"K{t}"] + lag, False))
        self.c(f"---- {name}: softmax")
        if a.prio: e("s_setprio 0")
        e("s_nop 7")
        e("s_nop 2")
        self.vblock(self.softmax_list(6 if a.maxk else 0), nsm, [mem[f"S{i}"] for i in range(nsm)],
                    lambda i: end_interval(idx[f"S{i}"] + lag, False), "V", a.tail)
        self.c(f"---- {name}: V block")
        self.htrace()
        if a.prio: e(f"s_setprio {a.prio}")
        self.mblock("V", msides("V"), lambda t: end_interval(idx[f"V{t}"] + lag, False))
        self.c(f"---- {name}: E")
        if a.prio: e("s_setprio 0")
        e(f"s_mov_b32 s{sPRV}, s{sCUR}")
        e(f"s_add_u32 s{sPRV2}, s{sCUR}, 6144")
        e(f"s_mov_b32 s{SO+2}, {0 if a.nostore else TENSOR_BYTES}")
        e("s_nop 3")
        for i in range(nem):
            last = i == nem - 1
            self.vblock(val[f"E{i}"], 1, [mem[f"E{i}"]], lambda _: end_interval(idx[f"E{i}"] + lag, False),
                        "K" if last else None, a.tail if last else 0)
        e(f"s_mov_b32 s{sCUR}, s{sNXT}")
        e(f"s_add_u32 s{sNXT}, s{sNXT}, {self.hstep}")
        e(f"s_add_u32 s{sNXT2}, s{sNXT}, 6144")
        e(f"s_sub_u32 s{sREM}, s{sREM}, 1")
        e(f"s_cmp_lg_u32 s{sREM}, 0")
        e(f"s_cbranch_scc1 L_head{name}{self.sfx}")
        self.c("---- last head: what the next head's K block would have done")
        done = [x for ph in phases if ph[0] == "E" for x in wat[ph]]
        for cc in range(3):
            if place[f"O{cc}"][0] != "E":
                for x in units[f"O{cc}"]: self.plain(x)
            for j in range(4):
                if (cc, j) not in done: e(self.ostore(cc, j, 0)[0])

    def check_schedule(self, name):
        n, lag = len(self.phases), self.a.lag
        rd = {int(ph[1]) + (4 if ph[0] == "V" else 0): i for i, ph in enumerate(self.phases) if ph[0] in "KV"}
        iss, cer = {}, {}
        for h in range(-1, 4):
            for g in range(n):
                for (t, ha) in self.issue[name].get(g, []): iss[8 * (h + ha) + t] = n * h + g
                for (t, ha) in self.cert.get(g, []): cer[8 * (h + ha) + t] = n * h + g
        order = sorted(iss, key=lambda x: (iss[x], x))
        assert order == sorted(order), "issue order must be stream order"
        for x in range(8, 24):
            h, t = divmod(x, 8)
            ra = n * h + rd[t]
            assert cer[x] < ra, ("cert", x)
            assert iss[x] <= cer[x], ("iss/cert", x)
            ho, to = divmod(x - NS, 8)
            assert iss[x] > n * ho + rd[to] + lag, ("slot", x, iss[x], n * ho + rd[to] + lag)
        self.pro_tiles[name] = [t for t in range(8) if iss[t] < 0]
        assert self.pro_tiles[name] == list(range(len(self.pro_tiles[name])))
        for t in range(1, 8):
            assert cer[t] >= 0, ("first-head cert", t)

    def schedule(self):
        a = self.a
        self.phases = a.phases.split(",")
        n = len(self.phases)
        rd = {int(ph[1]) + (4 if ph[0] == "V" else 0): i for i, ph in enumerate(self.phases) if ph[0] in "KV"}
        self.issue, self.cert, self.pro_tiles = {"A": {}, "B": {}}, {}, {}
        for name, dd in (("A", a.dist), ("B", a.distB or a.dist)):
            dist = [int(x) for x in dd.split(",")]
            for t in range(8):
                g = rd[t] - dist[t]
                self.issue[name].setdefault(g % n, []).append((t, 1 if g < 0 else 0))
            for g in self.issue[name]: self.issue[name][g].sort(key=lambda x: (x[1], x[0]))
        for t in range(8):
            g = rd[t] - 1
            self.cert.setdefault(g % n, []).append((t, 1 if g < 0 else 0))
        for name in "AB": self.check_schedule(name)

    def build(self, odd=None):
        e, a = self.e, self.a
        lds = NS * TILE
        self.o.append(HEADER + f"; @launch grid=(256,1,1) block=(512,1,1) lds={lds}")
        self.o.append('.amdgcn_target "amdgcn-amd-amdhsa--gfx950"')
        self.o.append(".text")
        self.o.append(f".globl {NAME}_kernel")
        self.o.append(".p2align 8")
        self.o.append(f".type {NAME}_kernel,@function")
        self.lab(f"{NAME}_kernel")
        self.p = Path()
        self.prologue()
        common = list(self.p.pro)
        paths = []
        variants = [("", a)] + ([("o", odd)] if odd else [])
        if odd:
            e(f"s_getreg_b32 s{sT}, hwreg(HW_REG_XCC_ID)")
            e(f"s_bitcmp1_b32 s{sT}, 0")
            e("s_cbranch_scc1 L_varo")
        for sfx, va in variants:
            self.a = va
            self.schedule()
            if sfx: self.lab("L_var" + sfx)
            e(f"s_cmp_ge_u32 s{sW}, 4")
            e(f"s_cbranch_scc1 L_grpB{sfx}")
            for name, lag in (("A", 0), ("B", va.lag)):
                if name == "B": self.lab("L_grpB" + sfx)
                self.p = Path(); self.p.pro = list(common)
                self.sfx = sfx
                self.group(name, lag)
                paths.append(self.p)
                if not (name == "B" and va is variants[-1][1]): e("s_branch L_fin")
        self.a = a
        self.lab("L_fin")
        if a.dbg:
            e("s_waitcnt vmcnt(0)")
            self.htrace()
            e(f"s_cmp_lg_u32 s{sW}, {a.dbg - 1}")
            e("s_cbranch_scc1 L_end")
            e("s_mov_b32 s60, s48")
            e("s_and_b32 s61, s49, 0xffff")
            e("s_mov_b32 s62, 256")
            e("s_mov_b32 s63, 0x20000")
            e("v_mbcnt_lo_u32_b32 v8, -1, 0")
            e("v_lshlrev_b32 v8, 2, v8")
            e(f"v_subrev_u32 v0, s50, v{TR0}")
            e("s_sub_u32 s68, s68, s52")
            e("s_lshr_b32 s68, s68, 4")
            e("v_writelane_b32 v0, s68, 9")
            e("s_not_b32 s50, s50")
            e("v_mov_b32 v1, s64")
            e("v_writelane_b32 v1, s50, 0")
            e("s_mov_b64 exec, 0x3ff")
            e("buffer_atomic_add v0, v8, s[60:63], 0 offen offset:8")
            e("s_mov_b64 exec, 3")
            e("buffer_atomic_umax v1, v8, s[60:63], 0 offen")
        if a.stamp:
            e("s_waitcnt vmcnt(0)")
            e("s_memrealtime s[54:55]")
            e("s_memtime s[56:57]")
            e("s_getreg_b32 s58, hwreg(HW_REG_XCC_ID)")
            e("s_getreg_b32 s67, hwreg(HW_REG_HW_ID)")
            e("s_waitcnt lgkmcnt(0)")
            e(f"s_lshl_b32 s59, s2, 3")
            e(f"s_add_u32 s59, s59, s{sW}")
            e(f"s_lshl_b32 s59, s59, 5")
            e("s_mov_b32 s60, s48")
            e("s_and_b32 s61, s49, 0xffff")
            e("s_mov_b32 s62, 65536")
            e("s_mov_b32 s63, 0x20000")
            for k, r in enumerate((50, 51, 54, 55, 52, 56, 58, 67)):
                e(f"v_mov_b32 v{k}, s{r}")
            e("v_mov_b32 v8, 0")
            e("s_mov_b64 exec, 1")
            e("buffer_store_dwordx4 v[0:3], v8, s[60:63], s59 offen")
            e("buffer_store_dwordx4 v[4:7], v8, s[60:63], s59 offen offset:16")
            if a.trace or a.htrace or a.rtrace:
                e("s_mov_b64 exec, -1")
                e("s_mov_b32 s62, 0x1000000")
                e("v_mbcnt_lo_u32_b32 v8, -1, 0")
                e("v_mbcnt_hi_u32_b32 v8, -1, v8")
                e("v_lshlrev_b32 v8, 2, v8")
                e("s_lshl_b32 s59, s59, 4")
                e("s_add_u32 s59, s59, 65536")
                e(f"buffer_store_dword v{TR0}, v8, s[60:63], s59 offen")
                e(f"buffer_store_dword v{TR1}, v8, s[60:63], s59 offen offset:256")
        e("s_waitcnt vmcnt(0)")
        self.lab("L_end")
        e("s_endpgm")
        for p in paths: self.resolve_waits(p)
        self.o.append(f""".section .rodata,"a"
.p2align 6
.amdhsa_kernel {NAME}_kernel
  .amdhsa_next_free_vgpr {NV}
  .amdhsa_next_free_sgpr 72
  .amdhsa_accum_offset {NV}
  .amdhsa_group_segment_fixed_size 0
  .amdhsa_kernarg_size 48
  .amdhsa_user_sgpr_count 2
  .amdhsa_user_sgpr_kernarg_segment_ptr 1
  .amdhsa_system_sgpr_workgroup_id_x 1
.end_amdhsa_kernel
""")
        return "\n".join(self.o)

    def resolve_waits(self, p):
        for (idx, tag, inpro, pos) in p.waits:
            c = []
            if inpro:
                seq = p.pro[:pos]
                last = max(i for i, t in enumerate(seq) if t == tag)
                c.append(len(seq) - 1 - last)
            else:
                for it in range(NH):
                    seq = list(p.pro)
                    for j in range(it + 1):
                        b = p.body if j < it else p.body[:pos]
                        seq += [(k, x, h + j) for (k, x, h) in b]
                    want = (tag[0], tag[1], tag[2] + it)
                    if it == 0 and want not in seq: continue
                    last = max(i for i, t in enumerate(seq) if t == want)
                    c.append(len(seq) - 1 - last)
            nn = min(c)
            assert nn <= 63
            self.o[idx] = f"    s_waitcnt vmcnt({nn})"

if __name__ == "__main__":
    ap = argparse.ArgumentParser()
    ap.add_argument("-o", default=f"cdna_kernels/{NAME}.s")
    ap.add_argument("--ld", default="nt")
    ap.add_argument("--ldq", default=None)
    ap.add_argument("--st", default="")
    ap.add_argument("--win", type=int, default=0)
    ap.add_argument("--dbg", type=int, default=0)
    ap.add_argument("--pace", type=int, default=-1)
    ap.add_argument("--pacelo", type=int, default=0)
    ap.add_argument("--pacehi", type=int, default=15)
    ap.add_argument("--front", type=float, default=1.0)
    ap.add_argument("--es", default="")
    ap.add_argument("--qatA", type=int, default=1)
    ap.add_argument("--qatB", type=int, default=9)
    ap.add_argument("--pf", default="")
    ap.add_argument("--pfsrc", default="Q")
    ap.add_argument("--pfld", default="")
    ap.add_argument("--vchain", type=int, default=0)
    ap.add_argument("--dupread", type=int, default=0)
    ap.add_argument("--xor", type=int, default=0)
    ap.add_argument("--hmul", type=int, default=1)
    ap.add_argument("--hstep", type=int, default=256)
    ap.add_argument("--lag", type=int, default=4)
    ap.add_argument("--prio", type=int, default=0)
    ap.add_argument("--tail", type=int, default=24)
    ap.add_argument("--phases", default="K0,K1,K2,K3,S0,S1,S2,S3,V0,V1,V2,V3,E0,E1,E2,E3")
    ap.add_argument("--dist", default="7,6,5,4,7,6,5,4")
    ap.add_argument("--distB", default="6,5,4,3,6,5,4,3")
    ap.add_argument("--wdistA", default="3,0,0,0,0,0,0,0,0,0,0,0,0,3,3,3")
    ap.add_argument("--wdistB", default="3,0,0,0,0,0,0,0,0,0,0,0,0,3,3,3")
    ap.add_argument("--qdistA", default="0,0,0,0,0,3,3,3,3,0,0,0,0,0,0,0")
    ap.add_argument("--qdistB", default="0,0,0,0,0,3,3,3,3,0,0,0,0,0,0,0")
    ap.add_argument("--placeA", default="O0:E0,O1:E1,O2:E2,T0:E3,T1:E3,T2:E3")
    ap.add_argument("--placeB", default="O0:E0,O1:E1,O2:E2,T0:E3,T1:E3,T2:E3")
    for k in ("nocompute", "nostore", "stamp", "noload", "trace", "htrace", "rtrace", "pkfma", "pkadd", "pkmul", "maxk", "kchain", "nomfma", "nosm", "nolds"):
        ap.add_argument("--" + k, action="store_true")
    ap.add_argument("--odd", default=None)
    a = ap.parse_args()
    if a.dbg: a.htrace = True
    odd = None
    if a.odd is not None:
        odd = ap.parse_args(sys.argv[1:] + a.odd.split())
    open(a.o, "w").write(G(a).build(odd))
```

```python
import struct, math, sys, argparse

NAME = "standalone__mha_softmax__near_ridge"
HEAD_BYTES = 256 * 384
TENSOR_BYTES = 1024 * HEAD_BYTES
TILE = 64 * 384
NS = 6
NH = 4
DEPTH = 6
BARPOS = 20

def f32hex(x):
    return "0x%08x" % struct.unpack("<I", struct.pack("<f", x))[0]

HEADER = """; Kernarg layout for this problem (48 bytes, ptrs only, base s[0:1]):
"""

S0 = 0
QR = 128
XR = 180
FB = 212
TR0, TR1 = 236, 237
MX = 238
VD = 244
VA0 = 247
VB0 = 248
VC = 249
VQO = 253
INV = 254
NV = 256

SQ, SK, SV, SO = 12, 16, 20, 24
sW, sW3, sCUR, sNXT, sPROD, sCONS, sREM, sC, sNC, sT, sNXT2, sPRV, sPRV2, sPLIM = range(32, 46)

def otile(t):
    return 64 + 16 * t if t < 4 else XR + 16 * (t - 4)
def qslot(n):
    return QR + 4 * n
QLD = [[1 + 4 * cc + j for j in range(4)] for cc in range(3)]
QTMP = [0, 3, 7]
QFIN = [[QTMP[cc], QLD[cc][1], QLD[cc][0], QLD[cc][3]] for cc in range(3)]
def qfrag(s):
    return qslot(QFIN[s // 4][s % 4])

def cost(s):
    return 2 if s.startswith("v_exp") or s.startswith("v_rcp") else 1

class Path:
    def __init__(self):
        self.pro, self.body, self.waits, self.inpro = [], [], [], True

class G:
    def __init__(self, a):
        self.a = a
        fl = lambda s: "".join(" " + x for x in s.split(",") if x)
        self.ld, self.st, self.ldq = fl(a.ld), fl(a.st), fl(a.ldq if a.ldq is not None else a.ld)
        self.o = []
        self.nlab = 0
        self.common = []
        self.p = None
    def e(self, s):
        self.o.append("    " + s)
    def lab(self, s):
        self.o.append(s + ":")
    def c(self, s):
        self.o.append("    ; " + s)
    def vm(self, s, tag):
        if self.a.win and not self.p.inpro:
            self.e(f"s_waitcnt vmcnt({self.a.win - 1})")
        self.e(s)
        (self.p.pro if self.p.inpro else self.p.body).append(tag)
    def emit(self, x):
        if isinstance(x, tuple): self.vm(*x)
        else: self.e(x)
    def wait_for(self, tag):
        self.o.append(None)
        p = self.p
        p.waits.append((len(self.o) - 1, tag, p.inpro, len(p.pro) if p.inpro else len(p.body)))

    def trace(self, vreg, inc=False):
        if self.a.rtrace and inc:
            self.a.htrace = True; self.htrace(); self.a.htrace = False
        if not self.a.trace:
            return
        e = self.e
        e("s_memtime s[64:65]")
        e("s_mov_b32 m0, s66")
        e("s_waitcnt lgkmcnt(0)")
        e(f"v_writelane_b32 v{vreg}, s64, m0")
        if inc:
            e("s_add_u32 s66, s66, 1")

    def htrace(self):
        if not self.a.htrace:
            return
        e = self.e
        e("s_memrealtime s[64:65]")
        e("s_memtime s[68:69]")
        e("s_mov_b32 m0, s66")
        e("s_waitcnt lgkmcnt(0)")
        e(f"v_writelane_b32 v{TR0}, s64, m0")
        e(f"v_writelane_b32 v{TR1}, s68, m0")
        e("s_add_u32 s66, s66, 1")

    def dma_list(self, t, rel, hd):
        srd = SK if t < 4 else SV
        headreg = sNXT if rel else sCUR
        off = (t % 4) * TILE
        o = []
        if rel:
            o += [f"s_cmp_eq_u32 s{sREM}, 1", f"s_cselect_b32 s{srd+2}, 0, s{srd+2}"]
        o.append(f"s_mov_b32 m0, s{sPROD}")
        if off:
            o.append(f"s_add_u32 s{sT}, s{headreg}, {off}")
            so = sT
        else:
            o.append("s_nop 0")
            so = headreg
        for i in range(3):
            of = f" offset:{1024*i}" if i else ""
            o.append((f"buffer_load_dwordx4 v{VD+i}, s[{srd}:{srd+3}], s{so} offen{of}{self.ld} lds", ("T", t, hd)))
        o += [f"s_add_u32 s{sPROD}, s{sPROD}, {TILE}",
              f"s_cmp_eq_u32 s{sPROD}, s{sPLIM}",
              f"s_cselect_b32 s{sPROD}, s{sW3}, s{sPROD}"]
        return o
    def qload(self, k, h0, h1, hd):
        cc, j = k // 4, k % 4
        r = qslot(QLD[cc][j])
        so = h1 if j >= 2 else h0
        off = (j & 1) * 3072 + 128 * cc
        o = f" offset:{off}" if off else ""
        return (f"buffer_load_dwordx4 v[{r}:{r+3}], v{VQO}, s[{SQ}:{SQ+3}], s{so} offen{o}{self.ldq}", ("Q", cc, hd))
    def oregs(self, cc):
        b = otile(2 * cc)
        return [b + 16, b + 4, b + 0, b + 12]
    def ostore(self, cc, j, hd):
        r = self.oregs(cc)[j]
        so = sPRV2 if j >= 2 else sPRV
        off = (j & 1) * 3072 + 128 * cc
        o = f" offset:{off}" if off else ""
        return (f"buffer_store_dwordx4 v[{r}:{r+3}], v{VQO}, s[{SO}:{SO+3}], s{so} offen{o}{self.st}", ("O", cc, hd))

    def transp(self, L, T):
        out = []
        for (a, b, d) in ((L[0], L[1], T), (L[2], L[3], L[0])):
            for k in range(4):
                out.append(f"v_cndmask_b32_dpp v{d+k}, v{b+k}, v{a+k}, vcc row_ror:8 row_mask:0xf bank_mask:0xf")
            for k in range(4):
                out.append(f"v_mov_b32_dpp v{b+k}, v{a+k} row_ror:8 row_mask:0xf bank_mask:0x3")
        F = [T, L[1], L[0], L[3]]
        for (a, b) in ((F[0], F[2]), (F[1], F[3])):
            for k in range(4):
                out.append(f"v_permlane16_swap_b32 v{a+k}, v{b+k}")
        return out

    def adv_cons(self):
        e = self.e
        e(f"s_add_u32 s{sCONS}, s{sCONS}, {TILE}")
        e(f"s_cmp_eq_u32 s{sCONS}, {NS*TILE}")
        e(f"s_cselect_b32 s{sCONS}, 0, s{sCONS}")

    def prologue(self):
        e, a = self.e, self.a
        e("s_cmp_ge_u32 s2, 256")
        e("s_cbranch_scc1 L_end")
        if a.stamp or a.dbg:
            e("s_memrealtime s[50:51]")
            e("s_memtime s[52:53]")
            e(f"s_load_dwordx2 s[48:49], s[0:1], {32 if a.dbg else 40}")
            e("s_mov_b32 s66, 0")
        e("s_load_dwordx8 s[4:11], s[0:1], 0")
        e("v_and_b32 v1, 63, v0                 ; lane")
        e("v_lshrrev_b32 v2, 6, v0              ; wave")
        e("v_lshrrev_b32 v3, 3, v1              ; lane/8")
        e(f"v_readfirstlane_b32 s{sW}, v2")
        e("v_and_b32 v4, 7, v1                  ; lane%8")
        e("v_and_b32 v5, 1, v2")
        e("v_lshlrev_b32 v5, 1, v5              ; (w&1)<<1")
        e("v_mul_u32_u24 v6, 3072, v2           ; w*3072")
        e("v_lshl_add_u32 v6, v3, 7, v6         ; + (lane/8)*128")
        for i in range(3):
            e(f"v_add_u32 v7, {8*i}, v3")
            e("v_mul_u32_u24 v7, 11, v7")
            e("v_lshrrev_b32 v7, 5, v7")
            e("v_bfe_u32 v8, v7, 1, 1")
            e("v_lshlrev_b32 v8, 2, v8")
            e("v_bfe_u32 v9, v7, 2, 1")
            e("v_or3_b32 v8, v8, v9, v5             ; f(row)")
            e("v_xor_b32 v8, v8, v4")
            e(f"v_lshl_add_u32 v{VD+i}, v8, 4, v6")
        e("v_lshrrev_b32 v8, 5, v1              ; h")
        e("v_lshl_add_u32 v11, v2, 5, v4")
        e("v_mul_u32_u24 v11, 384, v11")
        e("v_and_b32 v12, 3, v3")
        e("v_lshl_add_u32 v11, v12, 5, v11")
        e(f"v_lshl_add_u32 v{VQO}, v8, 4, v11   ; (32w + lane%8)*384 + 32*((lane>>3)&3) + 16h")
        e(f"s_mul_i32 s{sW3}, s{sW}, 3072")
        e(f"s_mov_b32 s{sPROD}, s{sW3}")
        e(f"s_add_u32 s{sPLIM}, s{sW3}, {NS*TILE}")
        if a.xor:
            e(f"s_xor_b32 s2, s2, {a.xor}")
        e(f"s_mul_i32 s{sCUR}, s2, {HEAD_BYTES * a.hmul}")
        self.hstep = a.hstep * HEAD_BYTES
        e("s_waitcnt lgkmcnt(0)")
        for srd, p, n in ((SQ, 4, TENSOR_BYTES), (SK, 6, TENSOR_BYTES), (SV, 8, TENSOR_BYTES), (SO, 10, 0)):
            if a.noload and srd != SO:
                n = 0
            e(f"s_mov_b32 s{srd}, s{p}")
            e(f"s_and_b32 s{srd+1}, s{p+1}, 0xffff")
            e(f"s_mov_b32 s{srd+2}, {n}")
            e(f"s_mov_b32 s{srd+3}, 0x20000")

    def setup2(self):
        e = self.e
        e("v_and_b32 v7, 31, v1                 ; m")
        e("v_bfe_u32 v9, v7, 1, 1")
        e("v_lshlrev_b32 v9, 2, v9")
        e("v_bfe_u32 v10, v7, 2, 2")
        e("v_or_b32 v9, v9, v10                 ; f(m)")
        e("v_xor_b32 v9, v9, v8                 ; f(m)^h")
        e("v_mul_u32_u24 v10, 384, v7           ; m*384")
        e(f"v_lshl_add_u32 v{VA0}, v9, 4, v10")
        e("v_bfe_u32 v9, v1, 2, 2               ; r")
        e("v_lshl_add_u32 v10, v8, 2, v9        ; 4h+r")
        e("v_mul_u32_u24 v10, 384, v10")
        e("v_bfe_u32 v11, v1, 1, 1              ; cc>>1")
        e("v_lshl_add_u32 v10, v11, 3, v10      ; base")
        e("v_bfe_u32 v11, v1, 3, 1              ; r>>1")
        e("v_lshlrev_b32 v11, 2, v11")
        e("v_bfe_u32 v12, v1, 4, 1              ; up")
        e("v_lshlrev_b32 v12, 1, v12")
        e("v_and_b32 v13, 1, v1")
        e("v_xor_b32 v13, v13, v8               ; (cc&1)^h")
        e("v_or3_b32 v11, v11, v12, v13         ; x")
        e(f"v_lshl_add_u32 v{VB0}, v11, 4, v10")
        e(f"s_mov_b32 s{sCONS}, 0")
        e(f"s_mov_b32 s{sREM}, {NH}")
        c = 192 ** -0.5 * math.log2(math.e)
        e(f"s_mov_b32 s{sC}, {f32hex(c)}")
        e(f"s_mov_b32 s{sNC}, {f32hex(-c)}")
        e(f"s_add_u32 s{sNXT}, s{sCUR}, {self.hstep}")
        e(f"s_add_u32 s{sNXT2}, s{sNXT}, 6144")
        e(f"s_mov_b32 s{sPRV}, s{sCUR}")
        e(f"s_mov_b32 s{sPRV2}, s{sCUR}")
        e("s_mov_b32 vcc_lo, 0x00ff00ff")
        e("s_mov_b32 vcc_hi, 0x00ff00ff")

    def addr_calc(self, kind):
        base = VA0 if kind == "K" else VB0
        o = [f"v_add_u32 v{VC}, s{sCONS}, v{base}"]
        o += [f"v_xor_b32 v{VC+u}, {u<<5}, v{VC}" for u in range(1, 4)]
        o += [f"s_add_u32 s{sCONS}, s{sCONS}, {TILE}",
              f"s_cmp_eq_u32 s{sCONS}, {NS*TILE}",
              f"s_cselect_b32 s{sCONS}, 0, s{sCONS}"]
        return o
    def kord(self, jj):
        return (jj % 12, jj // 12) if self.a.kchain else (jj // 2, jj % 2)
    def vord(self, jj):
        if self.a.vchain == 4: return (jj % 4, jj // 4)
        if self.a.vchain == 2: return (2 * (jj // 12) + jj % 2, (jj % 12) // 2)
        return (jj // 6, jj % 6)
    def item_reads(self, kind, j):
        r = self.item_reads0(kind, j)
        if self.a.dupread and j % self.a.dupread == 0:
            r = [x.replace(f"v[{FB + 4 * (j % DEPTH)}:", f"v[{TR0 - 2}:").replace(f":{FB + 4 * (j % DEPTH) + 3}]", f":{TR0 + 1}]") for x in r[:0]] + r
        return r
    def item_reads0(self, kind, j):
        b = FB + 4 * (j % DEPTH)
        jj = j % 24
        if kind == "K":
            s, st = self.kord(jj)
            return [f"ds_read_b128 v[{b}:{b+3}], v{VC+s%4} offset:{st*12288+128*(s//4)}"]
        ks, t = self.vord(jj)
        off = ks * 6144 + (t // 2) * 128
        return [f"ds_read_b64_tr_b16 v[{b}:{b+1}], v{VC+2*(t%2)} offset:{off}",
                f"ds_read_b64_tr_b16 v[{b+2}:{b+3}], v{VC+2*(t%2)+1} offset:{off+3072}"]
    def item_mfma(self, kind, j):
        b = FB + 4 * (j % DEPTH)
        tl, jj = j // 24, j % 24
        if kind == "K":
            s, st = self.kord(jj)
            D = S0 + 16 * (2 * tl + st)
            C = "0" if s == 0 else f"v[{D}:{D+15}]"
            q = qfrag(s)
            return f"v_mfma_f32_32x32x16_bf16 v[{D}:{D+15}], v[{b}:{b+3}], v[{q}:{q+3}], {C}"
        ks, t = self.vord(jj)
        D = otile(t)
        P = 8 * (2 * tl + ks // 2) + 4 * (ks % 2)
        C = "0" if (tl == 0 and ks == 0) else f"v[{D}:{D+15}]"
        return f"v_mfma_f32_32x32x16_bf16 v[{D}:{D+15}], v[{b}:{b+3}], v[{P}:{P+3}], {C}"

    def plain(self, x):
        if isinstance(x, tuple):
            if x[0] == "WAIT": self.wait_for(x[1])
            elif x[0] == "LABEL": self.lab(x[1])
            else: self.vm(*x)
        elif self.a.nocompute and x.startswith(("v_", "ds_")):
            pass
        elif self.a.nomfma and x.startswith("v_mfma"):
            self.e("s_nop 15"); self.e("s_nop 15")
        elif self.a.nosm and x.startswith(("v_exp", "v_fma", "v_add_f32", "v_max3")):
            pass
        elif self.a.nolds and x.startswith("ds_read") and not self.p.inpro:
            pass
        else:
            self.e(x)

    def preread(self, kind):
        for x in self.addr_calc(kind): self.plain(x)
        for j in range(DEPTH):
            for r in self.item_reads(kind, j): self.plain(r)

    def mblock(self, kind, sides, barrier):
        rpf = 1 if kind == "K" else 2
        pend = list(range(DEPTH))
        def req(j):
            for r in self.item_reads(kind, j): self.plain(r)
            pend.append(j)
        for j in range(96):
            tl, jj = j // 24, j % 24
            if j in pend:
                k = pend.index(j)
                if not self.a.nocompute:
                    self.e(f"s_waitcnt lgkmcnt({(len(pend) - k - 1) * rpf})")
                del pend[:k + 1]
            self.plain(self.item_mfma(kind, j))
            if jj + DEPTH < 24:
                req(j + DEPTH)
            elif jj == 24 - DEPTH and tl < 3:
                for x in self.addr_calc(kind): self.plain(x)
            if jj == BARPOS:
                barrier(tl)
                pend.clear()
                if tl < 3:
                    for k in range(BARPOS + DEPTH - 23): req(24 * (tl + 1) + k)
            elif jj > BARPOS and tl < 3:
                req(j + DEPTH)
            for x in sides.get(j, []):
                self.plain(x)

    def max_list(self, tiles, first):
        o = []
        vals = [16 * t + i for t in tiles for i in range(16)]
        k = 0
        if first:
            o.append(f"v_max_f32 v{MX}, v{vals[0]}, v{vals[1]}")
            o.append(f"v_max_f32 v{MX+1}, v{vals[2]}, v{vals[3]}")
            k = 4
        ch = 0
        while k < len(vals):
            o.append(f"v_max3_f32 v{MX+ch}, v{MX+ch}, v{vals[k]}, v{vals[k+1]}")
            ch ^= 1
            k += 2
        return o

    def softmax_list(self, maxdone):
        a = self.a
        o = []
        e = o.append
        M, NEG, SUM = MX, MX + 2, MX + 4
        o += self.max_list(list(range(maxdone, 8)), maxdone == 0)
        e(f"v_max_f32 v{M}, v{M}, v{M+1}")
        e(f"v_mov_b32 v{M+1}, v{M}")
        e("s_nop 1")
        e(f"v_permlane32_swap_b32 v{M}, v{M+1}")
        e(f"v_max_f32 v{M}, v{M}, v{M+1}")
        e(f"v_mul_f32 v{NEG}, s{sNC}, v{M}")
        if a.pkfma:
            e(f"v_mov_b32 v{NEG+1}, s{sC}")
        def fma(i):
            if a.pkfma:
                e(f"v_pk_fma_f32 v[{2*i}:{2*i+1}], v[{2*i}:{2*i+1}], v[{NEG}:{NEG+1}], v[{NEG}:{NEG+1}] op_sel:[0,1,0] op_sel_hi:[1,1,0]")
            else:
                e(f"v_fma_f32 v{2*i}, v{2*i}, s{sC}, v{NEG}")
                e(f"v_fma_f32 v{2*i+1}, v{2*i+1}, s{sC}, v{NEG}")
        def ex(i):
            e(f"v_exp_f32 v{2*i}, v{2*i}")
            e(f"v_exp_f32 v{2*i+1}, v{2*i+1}")
        def fin(i):
            if i == 0:
                e(f"v_mov_b32 v{SUM}, v0")
                e(f"v_mov_b32 v{SUM+1}, v1")
            elif a.pkadd:
                e(f"v_pk_add_f32 v[{SUM}:{SUM+1}], v[{SUM}:{SUM+1}], v[{2*i}:{2*i+1}]")
            else:
                e(f"v_add_f32 v{SUM}, v{SUM}, v{2*i}")
                e(f"v_add_f32 v{SUM+1}, v{SUM+1}, v{2*i+1}")
            e(f"v_cvt_pk_bf16_f32 v{i}, v{2*i}, v{2*i+1}")
        fma(0); fma(1); ex(0)
        for i in range(64):
            if i + 2 < 64: fma(i + 2)
            if i + 1 < 64: ex(i + 1)
            else: e("s_nop 0")
            fin(i)
        e(f"v_add_f32 v{SUM}, v{SUM}, v{SUM+1}")
        e(f"v_mov_b32 v{SUM+1}, v{SUM}")
        e("s_nop 1")
        e(f"v_permlane32_swap_b32 v{SUM}, v{SUM+1}")
        e(f"v_add_f32 v{SUM}, v{SUM}, v{SUM+1}")
        e(f"v_rcp_f32 v{INV}, v{SUM}")
        return o

    def ochunk_list(self, cc):
        o = []
        b = otile(2 * cc)
        for i in range(4):
            if self.a.pkmul:
                for k in range(4):
                    r = b + 8 * i + 2 * k
                    o.append(f"v_pk_mul_f32 v[{r}:{r+1}], v[{r}:{r+1}], v[{INV}:{INV+1}] op_sel_hi:[1,0]")
            else:
                for k in range(8):
                    o.append(f"v_mul_f32 v{b+8*i+k}, v{b+8*i+k}, v{INV}")
            for k in range(4):
                o.append(f"v_cvt_pk_bf16_f32 v{b+4*i+k}, v{b+8*i+2*k}, v{b+8*i+2*k+1}")
        o += self.transp([b, b + 4, b + 8, b + 12], b + 16)
        return o
    def qt_list(self, cc):
        return self.transp([qslot(x) for x in QLD[cc]], qslot(QTMP[cc]))

    def vblock(self, lst, nparts, groups, barrier, nxt, tail):
        n = len(lst)
        cs = [0]
        for s in lst: cs.append(cs[-1] + (cost(s) if isinstance(s, str) else 0))
        lastpos = max(n - tail, 0)
        tot = cs[lastpos]
        cuts = []
        for p in range(1, nparts):
            cuts.append(min(i for i in range(n + 1) if cs[i] >= tot * p / nparts))
        cuts.append(lastpos)
        lo = 0
        ins = {}
        for p, hi in enumerate(cuts):
            g = groups[p]
            for k, grp in enumerate(g):
                ins.setdefault(lo + int(k * (hi - lo) * self.a.front) // len(g), []).extend(grp)
            lo = hi
        for i in range(n + 1):
            if i in cuts:
                for p, cpos in enumerate(cuts):
                    if cpos == i:
                        barrier(p)
                        if p == nparts - 1 and nxt: self.preread(nxt)
            for x in ins.get(i, []): self.plain(x)
            if i < n: self.plain(lst[i])

    def group(self, name, lag):
        e, a = self.e, self.a
        phases = self.phases
        n = len(phases)
        p = self.p
        def dma_groups(g, pro):
            out = []
            for (t, ha) in self.issue[name].get(g % n, []):
                if pro:
                    out.append(self.dma_list(t, 0, 0)); assert ha == 0
                else:
                    rel = ha + (1 if g >= n else 0)
                    assert rel in (0, 1), (name, g, t, ha)
                    d = self.dma_list(t, rel, rel)
                    if g > n:
                        self.nlab += 1
                        d = [d[0], f"s_cbranch_scc1 L_nd{self.nlab}"] + d[2:] + [("LABEL", f"L_nd{self.nlab}")]
                    out.append(d)
            return out
        def end_interval(g, pro):
            self.trace(TR0)
            for (t, ha) in self.cert.get(g % n, []):
                self.wait_for(("T", t, ha if pro else ha + (1 if g >= n else 0)))
            if a.pace >= 0 and a.pacelo <= g <= a.pacehi:
                if pro:
                    e(f"s_waitcnt vmcnt({a.pace})")
                else:
                    self.nlab += 1
                    e(f"s_cmp_lg_u32 s{sREM}, {NH}")
                    e(f"s_cbranch_scc1 L_np{self.nlab}")
                    e(f"s_waitcnt vmcnt({a.pace})")
                    self.lab(f"L_np{self.nlab}")
            e("s_waitcnt lgkmcnt(0)")
            if not pro and g >= n:
                self.nlab += 1
                e(f"s_cmp_eq_u32 s{sREM}, 1")
                e(f"s_cbranch_scc1 L_nb{self.nlab}")
                e("s_barrier")
                self.lab(f"L_nb{self.nlab}")
            else:
                e("s_barrier")
            self.trace(TR1, True)
        pt = self.pro_tiles[name]
        qa = a.qatA if name == "A" else a.qatB
        order = pt[:qa] + ["Q"] + pt[qa:]
        es = [x.split(",") if x else [] for x in a.es.split(";")] if a.es else None
        if es:
            order = [0, "Q"] if name == "A" else [0]
        for step in order:
            if step == "Q":
                e(f"s_add_u32 s{sT}, s{sCUR}, 6144")
                for k in range(12):
                    self.vm(*self.qload(k, sCUR, sT, 0))
            else:
                for x in self.dma_list(step, 0, 0): self.emit(x)
        if es and name == "A":
            e(f"s_add_u32 s{sPROD}, s{sPROD}, {TILE * (len(pt) - 1)}")
        self.setup2()
        if es and name == "B":
            e(f"s_add_u32 s{sPRV2}, s{sCUR}, 6144")
        self.wait_for(("T", 0, 0))
        e("s_barrier")
        qn, tdone = 0, []
        pf = [int(x) for x in a.pf.split(",")] if (a.pf and lag) else []
        if pf:
            e("v_lshlrev_b32 v14, 4, v1")
        done = 0
        for g in range(lag):
            for tok in (es[g] if es else []):
                if tok[0] == "K":
                    t = int(tok[1])
                    if t in self.pro_tiles["A"]:
                        e(f"s_sub_u32 m0, s{sPROD}, 12288")
                        e(f"s_add_u32 s{sT}, s{sCUR}, {t * TILE - 12288}")
                        for i in range(3):
                            of = f" offset:{1024*i}" if i else ""
                            self.vm(f"buffer_load_dwordx4 v{VD+i}, s[{SK}:{SK+3}], s{sT} offen{of}{self.ld} lds", ("T", t, 0))
                    for x in self.dma_list(t, 0, 0): self.emit(x)
                elif tok[0] == "Q":
                    for k in range(int(tok[1:])):
                        self.vm(*self.qload(qn, sCUR, sPRV2, 0)); qn += 1
            for grp, (t, _) in zip(dma_groups(g, True), self.issue[name].get(g % n, [])):
                if es and t <= 3: continue
                for x in grp: self.emit(x)
            for tok in (es[g] if es else []):
                if tok[0] == "T":
                    cc = int(tok[1]); tdone.append(cc)
                    self.wait_for(("Q", cc, 0))
                    for x in self.qt_list(cc): self.plain(x)
            if pf and pf[g]:
                srd = {"Q": SQ, "K": SK, "V": SV}[a.pfsrc]
                e(f"s_sub_u32 s{sT}, s{sW}, 4")
                e(f"s_mul_i32 s{sT}, s{sT}, {1024 * pf[g]}")
                e(f"s_add_u32 s{sT}, s{sT}, s{sNXT}")
                if done: e(f"s_add_u32 s{sT}, s{sT}, {done}")
                fl = "".join(" " + x for x in a.pfld.split(",") if x)
                for k in range(pf[g]):
                    if k == 4: e(f"s_add_u32 s{sT}, s{sT}, 4096")
                    of = f" offset:{1024 * (k % 4)}" if k % 4 else ""
                    self.vm(f"buffer_load_dwordx4 v[{XR}:{XR+3}], v14, s[{srd}:{srd+3}], s{sT} offen{of}{fl}", ("P", g, 0))
                done += 4 * 1024 * pf[g]
                assert done <= HEAD_BYTES and pf[g] <= 8
            end_interval(g, True)
        assert not (es and lag) or qn == 12
        self.preread("K")
        for cc in range(3):
            if cc in tdone: continue
            self.wait_for(("Q", cc, 0))
            for s in self.qt_list(cc): self.plain(s)
        p.inpro = False
        self.o.append(".p2align 6")
        self.lab(f"L_head{name}{self.sfx}")
        self.htrace()
        place = dict(x.split(":") for x in (a.placeA if name == "A" else a.placeB).split(","))
        qdist = dict(zip(phases, [int(x) for x in (a.qdistA if name == "A" else a.qdistB).split(",")]))
        assert sum(qdist.values()) == 12
        qk = [4 * cc + j for j in range(4) for cc in range(3)] if a.qord == "j" else list(range(12))
        ql = [self.qload(k, sNXT, sNXT2, 1) for k in qk]
        qpre = [f"s_cmp_eq_u32 s{sREM}, 1", f"s_cselect_b32 s{SQ+2}, 0, s{SQ+2}"]
        units = {}
        for cc in range(3):
            units[f"O{cc}"] = self.ochunk_list(cc)
            units[f"T{cc}"] = [("WAIT", ("Q", cc, 1))] + self.qt_list(cc)
        wdist = dict(zip(phases, [int(x) for x in (a.wdistA if name == "A" else a.wdistB).split(",")]))
        assert sum(wdist.values()) == 12
        idx = {ph: i for i, ph in enumerate(phases)}
        e0 = idx["E0"]
        cyc = lambda ph: (idx[ph] - e0) % n
        wl = [(cc, j) for cc in range(3) for j in range(4)]
        if a.word == "j": wl = [(cc, j) for j in range(4) for cc in range(3)]
        wat = {}
        for ph in sorted(phases, key=cyc):
            wat[ph] = [wl.pop(0) for _ in range(wdist[ph])]
            for (cc, j) in wat[ph]:
                assert cyc(ph) > cyc(place[f"O{cc}"]), ("store before its chunk", ph, cc)
                lastok = ("K1", "K2", [x for x in phases if x[0] == "S"][-1])[cc]
                assert cyc(ph) <= cyc(lastok), ("store too late", ph, cc)
        mem, val = {}, {}
        for pi, ph in enumerate(phases):
            g = dma_groups(pi + lag, False)
            for k in range(qdist[ph]):
                g.append((qpre if len(ql) == 12 else []) + [ql.pop(0)])
            g += [[self.ostore(cc, j, -1 if ph[0] != "E" else 0)] for (cc, j) in wat[ph]]
            mem[ph] = g
            v = []
            for u in ("O0", "O1", "O2", "T0", "T1", "T2"):
                if place[u] == ph: v += units[u]
            val[ph] = v
        def msides(kind):
            sides = {}
            for tl in range(4):
                ph = f"{kind}{tl}"
                lo, hi = (24 * tl - 2 if tl else 0), 24 * tl + BARPOS - 1
                v = list(val[ph])
                if kind == "K" and a.maxk and tl >= 1:
                    v = v + self.max_list([2 * tl - 2, 2 * tl - 1], tl == 1)
                vlo = 24 * tl + 5 if (kind == "K" and a.maxk and tl >= 1 and not val[ph]) else lo
                for k, s in enumerate(v):
                    sides.setdefault(vlo + (k * (hi - vlo + 1)) // len(v), []).append(s)
                g = mem[ph]
                for k, grp in enumerate(g):
                    sides.setdefault(lo + int(k * (hi - lo + 1) * a.front) // len(g), []).extend(grp)
            return sides
        nsm = sum(1 for x in phases if x[0] == "S")
        nem = sum(1 for x in phases if x[0] == "E")
        self.c(f"---- {name}: K block")
        if a.prio: e(f"s_setprio {a.prio}")
        self.mblock("K", msides("K"), lambda t: end_interval(idx[f"K{t}"] + lag, False))
        self.c(f"---- {name}: softmax")
        if a.prio: e("s_setprio 0")
        e("s_nop 7")
        e("s_nop 2")
        self.vblock(self.softmax_list(6 if a.maxk else 0), nsm, [mem[f"S{i}"] for i in range(nsm)],
                    lambda i: end_interval(idx[f"S{i}"] + lag, False), "V", a.tail)
        self.c(f"---- {name}: V block")
        self.htrace()
        if a.prio: e(f"s_setprio {a.prio}")
        self.mblock("V", msides("V"), lambda t: end_interval(idx[f"V{t}"] + lag, False))
        self.c(f"---- {name}: E")
        if a.prio: e("s_setprio 0")
        e(f"s_mov_b32 s{sPRV}, s{sCUR}")
        e(f"s_add_u32 s{sPRV2}, s{sCUR}, 6144")
        e(f"s_mov_b32 s{SO+2}, {0 if a.nostore else TENSOR_BYTES}")
        e("s_nop 3")
        for i in range(nem):
            last = i == nem - 1
            self.vblock(val[f"E{i}"], 1, [mem[f"E{i}"]], lambda _: end_interval(idx[f"E{i}"] + lag, False),
                        "K" if last else None, a.tail if last else 0)
        e(f"s_mov_b32 s{sCUR}, s{sNXT}")
        e(f"s_add_u32 s{sNXT}, s{sNXT}, {self.hstep}")
        e(f"s_add_u32 s{sNXT2}, s{sNXT}, 6144")
        e(f"s_sub_u32 s{sREM}, s{sREM}, 1")
        e(f"s_cmp_lg_u32 s{sREM}, 0")
        e(f"s_cbranch_scc1 L_head{name}{self.sfx}")
        self.c("---- last head: what the next head's K block would have done")
        done = [x for ph in phases if ph[0] == "E" for x in wat[ph]]
        for cc in range(3):
            if place[f"O{cc}"][0] != "E":
                for x in units[f"O{cc}"]: self.plain(x)
            for j in range(4):
                if (cc, j) not in done: e(self.ostore(cc, j, 0)[0])

    def check_schedule(self, name):
        n, lag = len(self.phases), self.a.lag
        rd = {int(ph[1]) + (4 if ph[0] == "V" else 0): i for i, ph in enumerate(self.phases) if ph[0] in "KV"}
        iss, cer = {}, {}
        for h in range(-1, 4):
            for g in range(n):
                for (t, ha) in self.issue[name].get(g, []): iss[8 * (h + ha) + t] = n * h + g
                for (t, ha) in self.cert.get(g, []): cer[8 * (h + ha) + t] = n * h + g
        order = sorted(iss, key=lambda x: (iss[x], x))
        assert order == sorted(order), "issue order must be stream order"
        for x in range(8, 24):
            h, t = divmod(x, 8)
            ra = n * h + rd[t]
            assert cer[x] < ra, ("cert", x)
            assert iss[x] <= cer[x], ("iss/cert", x)
            ho, to = divmod(x - NS, 8)
            assert iss[x] > n * ho + rd[to] + lag, ("slot", x, iss[x], n * ho + rd[to] + lag)
        self.pro_tiles[name] = [t for t in range(8) if iss[t] < 0]
        assert self.pro_tiles[name] == list(range(len(self.pro_tiles[name])))
        for t in range(1, 8):
            assert cer[t] >= 0, ("first-head cert", t)

    def schedule(self):
        a = self.a
        self.phases = a.phases.split(",")
        n = len(self.phases)
        rd = {int(ph[1]) + (4 if ph[0] == "V" else 0): i for i, ph in enumerate(self.phases) if ph[0] in "KV"}
        self.issue, self.cert, self.pro_tiles = {"A": {}, "B": {}}, {}, {}
        for name, dd in (("A", a.dist), ("B", a.distB or a.dist)):
            dist = [int(x) for x in dd.split(",")]
            for t in range(8):
                g = rd[t] - dist[t]
                self.issue[name].setdefault(g % n, []).append((t, 1 if g < 0 else 0))
            for g in self.issue[name]: self.issue[name][g].sort(key=lambda x: (x[1], x[0]))
        for t in range(8):
            g = rd[t] - 1
            self.cert.setdefault(g % n, []).append((t, 1 if g < 0 else 0))
        for name in "AB": self.check_schedule(name)

    def build(self, odd=None):
        e, a = self.e, self.a
        lds = NS * TILE
        self.o.append(HEADER + f"; @launch grid=(256,1,1) block=(512,1,1) lds={lds}")
        self.o.append('.amdgcn_target "amdgcn-amd-amdhsa--gfx950"')
        self.o.append(".text")
        self.o.append(f".globl {NAME}_kernel")
        self.o.append(".p2align 8")
        self.o.append(f".type {NAME}_kernel,@function")
        self.lab(f"{NAME}_kernel")
        self.p = Path()
        self.prologue()
        common = list(self.p.pro)
        paths = []
        variants = [("", a)] + ([("o", odd)] if odd else [])
        if odd:
            e(f"s_getreg_b32 s{sT}, hwreg(HW_REG_XCC_ID)")
            e(f"s_bitcmp1_b32 s{sT}, 0")
            e("s_cbranch_scc1 L_varo")
        for sfx, va in variants:
            self.a = va
            self.schedule()
            if sfx: self.lab("L_var" + sfx)
            e(f"s_cmp_ge_u32 s{sW}, 4")
            e(f"s_cbranch_scc1 L_grpB{sfx}")
            for name, lag in (("A", 0), ("B", va.lag)):
                if name == "B": self.lab("L_grpB" + sfx)
                self.p = Path(); self.p.pro = list(common)
                self.sfx = sfx
                self.group(name, lag)
                paths.append(self.p)
                if not (name == "B" and va is variants[-1][1]): e("s_branch L_fin")
        self.a = a
        self.lab("L_fin")
        if a.dbg:
            e("s_waitcnt vmcnt(0)")
            self.htrace()
            e(f"s_cmp_lg_u32 s{sW}, {a.dbg - 1}")
            e("s_cbranch_scc1 L_end")
            e("s_mov_b32 s60, s48")
            e("s_and_b32 s61, s49, 0xffff")
            e("s_mov_b32 s62, 256")
            e("s_mov_b32 s63, 0x20000")
            e("v_mbcnt_lo_u32_b32 v8, -1, 0")
            e("v_lshlrev_b32 v8, 2, v8")
            e(f"v_subrev_u32 v0, s50, v{TR0}")
            e("s_sub_u32 s68, s68, s52")
            e("s_lshr_b32 s68, s68, 4")
            e("v_writelane_b32 v0, s68, 9")
            e("s_not_b32 s50, s50")
            e("v_mov_b32 v1, s64")
            e("v_writelane_b32 v1, s50, 0")
            e("s_mov_b64 exec, 0x3ff")
            e("buffer_atomic_add v0, v8, s[60:63], 0 offen offset:8")
            e("s_mov_b64 exec, 3")
            e("buffer_atomic_umax v1, v8, s[60:63], 0 offen")
        if a.stamp:
            e("s_waitcnt vmcnt(0)")
            e("s_memrealtime s[54:55]")
            e("s_memtime s[56:57]")
            e("s_getreg_b32 s58, hwreg(HW_REG_XCC_ID)")
            e("s_getreg_b32 s67, hwreg(HW_REG_HW_ID)")
            e("s_waitcnt lgkmcnt(0)")
            e(f"s_lshl_b32 s59, s2, 3")
            e(f"s_add_u32 s59, s59, s{sW}")
            e(f"s_lshl_b32 s59, s59, 5")
            e("s_mov_b32 s60, s48")
            e("s_and_b32 s61, s49, 0xffff")
            e("s_mov_b32 s62, 65536")
            e("s_mov_b32 s63, 0x20000")
            for k, r in enumerate((50, 51, 54, 55, 52, 56, 58, 67)):
                e(f"v_mov_b32 v{k}, s{r}")
            e("v_mov_b32 v8, 0")
            e("s_mov_b64 exec, 1")
            e("buffer_store_dwordx4 v[0:3], v8, s[60:63], s59 offen")
            e("buffer_store_dwordx4 v[4:7], v8, s[60:63], s59 offen offset:16")
            if a.trace or a.htrace or a.rtrace:
                e("s_mov_b64 exec, -1")
                e("s_mov_b32 s62, 0x1000000")
                e("v_mbcnt_lo_u32_b32 v8, -1, 0")
                e("v_mbcnt_hi_u32_b32 v8, -1, v8")
                e("v_lshlrev_b32 v8, 2, v8")
                e("s_lshl_b32 s59, s59, 4")
                e("s_add_u32 s59, s59, 65536")
                e(f"buffer_store_dword v{TR0}, v8, s[60:63], s59 offen")
                e(f"buffer_store_dword v{TR1}, v8, s[60:63], s59 offen offset:256")
        e("s_waitcnt vmcnt(0)")
        self.lab("L_end")
        e("s_endpgm")
        for p in paths: self.resolve_waits(p)
        self.o.append(f""".section .rodata,"a"
.p2align 6
.amdhsa_kernel {NAME}_kernel
  .amdhsa_next_free_vgpr {NV}
  .amdhsa_next_free_sgpr 72
  .amdhsa_accum_offset {NV}
  .amdhsa_group_segment_fixed_size 0
  .amdhsa_kernarg_size 48
  .amdhsa_user_sgpr_count 2
  .amdhsa_user_sgpr_kernarg_segment_ptr 1
  .amdhsa_system_sgpr_workgroup_id_x 1
.end_amdhsa_kernel
""")
        return "\n".join(self.o)

    def resolve_waits(self, p):
        for (idx, tag, inpro, pos) in p.waits:
            c = []
            if inpro:
                seq = p.pro[:pos]
                last = max(i for i, t in enumerate(seq) if t == tag)
                c.append(len(seq) - 1 - last)
            else:
                for it in range(NH):
                    seq = list(p.pro)
                    for j in range(it + 1):
                        b = p.body if j < it else p.body[:pos]
                        seq += [(k, x, h + j) for (k, x, h) in b]
                    want = (tag[0], tag[1], tag[2] + it)
                    if it == 0 and want not in seq: continue
                    last = max(i for i, t in enumerate(seq) if t == want)
                    c.append(len(seq) - 1 - last)
            nn = min(c)
            assert nn <= 63
            self.o[idx] = f"    s_waitcnt vmcnt({nn})"

if __name__ == "__main__":
    ap = argparse.ArgumentParser()
    ap.add_argument("-o", default=f"cdna_kernels/{NAME}.s")
    ap.add_argument("--ld", default="nt")
    ap.add_argument("--ldq", default=None)
    ap.add_argument("--st", default="")
    ap.add_argument("--win", type=int, default=0)
    ap.add_argument("--qord", default="c")
    ap.add_argument("--word", default="c")
    ap.add_argument("--dbg", type=int, default=0)
    ap.add_argument("--pace", type=int, default=-1)
    ap.add_argument("--pacelo", type=int, default=0)
    ap.add_argument("--pacehi", type=int, default=15)
    ap.add_argument("--front", type=float, default=1.0)
    ap.add_argument("--es", default="")
    ap.add_argument("--qatA", type=int, default=1)
    ap.add_argument("--qatB", type=int, default=9)
    ap.add_argument("--pf", default="")
    ap.add_argument("--pfsrc", default="Q")
    ap.add_argument("--pfld", default="")
    ap.add_argument("--vchain", type=int, default=0)
    ap.add_argument("--dupread", type=int, default=0)
    ap.add_argument("--xor", type=int, default=0)
    ap.add_argument("--hmul", type=int, default=1)
    ap.add_argument("--hstep", type=int, default=256)
    ap.add_argument("--lag", type=int, default=4)
    ap.add_argument("--prio", type=int, default=0)
    ap.add_argument("--tail", type=int, default=24)
    ap.add_argument("--phases", default="K0,K1,K2,K3,S0,S1,S2,S3,V0,V1,V2,V3,E0,E1,E2,E3")
    ap.add_argument("--dist", default="7,6,5,4,7,6,5,4")
    ap.add_argument("--distB", default="6,5,4,3,6,5,4,3")
    ap.add_argument("--wdistA", default="3,0,0,0,0,0,0,0,0,0,0,0,0,3,3,3")
    ap.add_argument("--wdistB", default="3,0,0,0,0,0,0,0,0,0,0,0,0,3,3,3")
    ap.add_argument("--qdistA", default="0,0,0,0,0,3,3,3,3,0,0,0,0,0,0,0")
    ap.add_argument("--qdistB", default="0,0,0,0,0,3,3,3,3,0,0,0,0,0,0,0")
    ap.add_argument("--placeA", default="O0:E0,O1:E1,O2:E2,T0:E3,T1:E3,T2:E3")
    ap.add_argument("--placeB", default="O0:E0,O1:E1,O2:E2,T0:E3,T1:E3,T2:E3")
    for k in ("nocompute", "nostore", "stamp", "noload", "trace", "htrace", "rtrace", "pkfma", "pkadd", "pkmul", "maxk", "kchain", "nomfma", "nosm", "nolds"):
        ap.add_argument("--" + k, action="store_true")
    ap.add_argument("--odd", default=None)
    a = ap.parse_args()
    if a.dbg: a.htrace = True
    odd = None
    if a.odd is not None:
        odd = ap.parse_args(sys.argv[1:] + a.odd.split())
    open(a.o, "w").write(G(a).build(odd))
```

```python
import struct, math, sys, argparse

NAME = "standalone__mha_softmax__near_ridge"
HEAD_BYTES = 256 * 384
TENSOR_BYTES = 1024 * HEAD_BYTES
TILE = 64 * 384
NS = 6
NH = 4
DEPTH = 6
BARPOS = 20

def f32hex(x):
    return "0x%08x" % struct.unpack("<I", struct.pack("<f", x))[0]

HEADER = """; Kernarg layout for this problem (48 bytes, ptrs only, base s[0:1]):
"""

S0 = 0
QR = 128
XR = 180
FB = 212
TR0, TR1 = 236, 237
MX = 238
VD = 244
VA0 = 247
VB0 = 248
VC = 249
VQO = 253
INV = 254
NV = 256

SQ, SK, SV, SO = 12, 16, 20, 24
sC2 = 46
sW, sW3, sCUR, sNXT, sPROD, sCONS, sREM, sC, sNC, sT, sNXT2, sPRV, sPRV2, sPLIM = range(32, 46)

def otile(t):
    return 64 + 16 * t if t < 4 else XR + 16 * (t - 4)
def qslot(n):
    return QR + 4 * n
QLD = [[1 + 4 * cc + j for j in range(4)] for cc in range(3)]
QTMP = [0, 3, 7]
QFIN = [[QTMP[cc], QLD[cc][1], QLD[cc][0], QLD[cc][3]] for cc in range(3)]
def qfrag(s):
    return qslot(QFIN[s // 4][s % 4])
def qfrag16(s, u):
    return qslot(QFIN[s >> 1][2 * u + (s & 1)])

def cost(s):
    return 2 if s.startswith("v_exp") or s.startswith("v_rcp") else 1

class Path:
    def __init__(self):
        self.pro, self.body, self.waits, self.inpro = [], [], [], True

class G:
    def __init__(self, a):
        self.a = a
        fl = lambda s: "".join(" " + x for x in s.split(",") if x)
        self.ld, self.st, self.ldq = fl(a.ld), fl(a.st), fl(a.ldq if a.ldq is not None else a.ld)
        self.o = []
        self.nlab = 0
        self.common = []
        self.p = None
    def e(self, s):
        self.o.append("    " + s)
    def lab(self, s):
        self.o.append(s + ":")
    def c(self, s):
        self.o.append("    ; " + s)
    def vm(self, s, tag):
        if self.a.win and not self.p.inpro:
            self.e(f"s_waitcnt vmcnt({self.a.win - 1})")
        self.e(s)
        (self.p.pro if self.p.inpro else self.p.body).append(tag)
    def emit(self, x):
        if isinstance(x, tuple): self.vm(*x)
        else: self.e(x)
    def wait_for(self, tag):
        self.o.append(None)
        p = self.p
        p.waits.append((len(self.o) - 1, tag, p.inpro, len(p.pro) if p.inpro else len(p.body)))

    def trace(self, vreg, inc=False):
        if self.a.rtrace and inc:
            self.a.htrace = True; self.htrace(); self.a.htrace = False
        if not self.a.trace:
            return
        e = self.e
        e("s_memtime s[64:65]")
        e("s_mov_b32 m0, s66")
        e("s_waitcnt lgkmcnt(0)")
        e(f"v_writelane_b32 v{vreg}, s64, m0")
        if inc:
            e("s_add_u32 s66, s66, 1")

    def htrace(self):
        if not self.a.htrace:
            return
        e = self.e
        e("s_memrealtime s[64:65]")
        e("s_memtime s[68:69]")
        e("s_mov_b32 m0, s66")
        e("s_waitcnt lgkmcnt(0)")
        e(f"v_writelane_b32 v{TR0}, s64, m0")
        e(f"v_writelane_b32 v{TR1}, s68, m0")
        e("s_add_u32 s66, s66, 1")

    def dma_list(self, t, rel, hd):
        srd = SK if t < 4 else SV
        headreg = sNXT if rel else sCUR
        off = (t % 4) * TILE
        o = []
        if rel:
            o += [f"s_cmp_eq_u32 s{sREM}, 1", f"s_cselect_b32 s{srd+2}, 0, s{srd+2}"]
        o.append(f"s_mov_b32 m0, s{sPROD}")
        if off:
            o.append(f"s_add_u32 s{sT}, s{headreg}, {off}")
            so = sT
        else:
            o.append("s_nop 0")
            so = headreg
        for i in range(3):
            of = f" offset:{1024*i}" if i else ""
            o.append((f"buffer_load_dwordx4 v{VD+i}, s[{srd}:{srd+3}], s{so} offen{of}{self.ld} lds", ("T", t, hd)))
        o += [f"s_add_u32 s{sPROD}, s{sPROD}, {TILE}",
              f"s_cmp_eq_u32 s{sPROD}, s{sPLIM}",
              f"s_cselect_b32 s{sPROD}, s{sW3}, s{sPROD}"]
        return o
    def qload(self, k, h0, h1, hd):
        cc, j = k // 4, k % 4
        r = qslot(QLD[cc][j])
        so = h1 if j >= 2 else h0
        off = (j & 1) * 3072 + 128 * cc
        o = f" offset:{off}" if off else ""
        return (f"buffer_load_dwordx4 v[{r}:{r+3}], v{VQO}, s[{SQ}:{SQ+3}], s{so} offen{o}{self.ldq}", ("Q", cc, hd))
    def oregs(self, cc):
        b = otile(2 * cc)
        return [b + 16, b + 4, b + 0, b + 12]
    def ostore(self, cc, j, hd):
        r = self.oregs(cc)[j]
        so = sPRV2 if j >= 2 else sPRV
        off = (j & 1) * 3072 + 128 * cc
        o = f" offset:{off}" if off else ""
        return (f"buffer_store_dwordx4 v[{r}:{r+3}], v{VQO}, s[{SO}:{SO+3}], s{so} offen{o}{self.st}", ("O", cc, hd))

    def transp(self, L, T, isq=False):
        out = []
        for (a, b, d) in ((L[0], L[1], T), (L[2], L[3], L[0])):
            for k in range(4):
                out.append(f"v_cndmask_b32_dpp v{d+k}, v{b+k}, v{a+k}, vcc row_ror:8 row_mask:0xf bank_mask:0xf")
            for k in range(4):
                out.append(f"v_mov_b32_dpp v{b+k}, v{a+k} row_ror:8 row_mask:0xf bank_mask:0x3")
        F = [T, L[1], L[0], L[3]]
        if self.a.m16:
            if not isq:
                for q in (F[0], F[1], F[2], F[3]):
                    out.append(f"v_permlane16_swap_b32 v{q}, v{q+2}")
                    out.append(f"v_permlane16_swap_b32 v{q+1}, v{q+3}")
            return out
        for (a, b) in ((F[0], F[2]), (F[1], F[3])):
            for k in range(4):
                out.append(f"v_permlane16_swap_b32 v{a+k}, v{b+k}")
        return out

    def adv_cons(self):
        e = self.e
        e(f"s_add_u32 s{sCONS}, s{sCONS}, {TILE}")
        e(f"s_cmp_eq_u32 s{sCONS}, {NS*TILE}")
        e(f"s_cselect_b32 s{sCONS}, 0, s{sCONS}")

    def prologue(self):
        e, a = self.e, self.a
        e("s_cmp_ge_u32 s2, 256")
        e("s_cbranch_scc1 L_end")
        if a.stamp or a.dbg:
            e("s_memrealtime s[50:51]")
            e("s_memtime s[52:53]")
            e(f"s_load_dwordx2 s[48:49], s[0:1], {32 if a.dbg else 40}")
            e("s_mov_b32 s66, 0")
        e("s_load_dwordx8 s[4:11], s[0:1], 0")
        e("v_and_b32 v1, 63, v0                 ; lane")
        e("v_lshrrev_b32 v2, 6, v0              ; wave")
        e("v_lshrrev_b32 v3, 3, v1              ; lane/8")
        e(f"v_readfirstlane_b32 s{sW}, v2")
        e("v_and_b32 v4, 7, v1                  ; lane%8")
        e("v_and_b32 v5, 1, v2")
        if not a.m16: e("v_lshlrev_b32 v5, 1, v5              ; (w&1)<<1")
        e("v_mul_u32_u24 v6, 3072, v2           ; w*3072")
        e("v_lshl_add_u32 v6, v3, 7, v6         ; + (lane/8)*128")
        for i in range(3):
            e(f"v_add_u32 v7, {8*i}, v3")
            e("v_mul_u32_u24 v7, 11, v7")
            e("v_lshrrev_b32 v7, 5, v7")
            if a.m16:
                e("v_and_or_b32 v8, v7, 6, v5           ; f(row)")
            else:
                e("v_bfe_u32 v8, v7, 1, 1")
                e("v_lshlrev_b32 v8, 2, v8")
                e("v_bfe_u32 v9, v7, 2, 1")
                e("v_or3_b32 v8, v8, v9, v5             ; f(row)")
            e("v_xor_b32 v8, v8, v4")
            e(f"v_lshl_add_u32 v{VD+i}, v8, 4, v6")
        e("v_lshrrev_b32 v8, 5, v1              ; h")
        e("v_lshl_add_u32 v11, v2, 5, v4")
        e("v_mul_u32_u24 v11, 384, v11")
        if a.m16:
            e("v_and_b32 v12, 1, v3")
            e("v_lshl_add_u32 v11, v12, 6, v11")
            e("v_bfe_u32 v12, v1, 4, 1")
            e("v_lshl_add_u32 v11, v12, 5, v11")
            e(f"v_lshl_add_u32 v{VQO}, v8, 4, v11   ; (32w + lane%8)*384 + 64*l3 + 32*l4 + 16*l5")
        else:
            e("v_and_b32 v12, 3, v3")
            e("v_lshl_add_u32 v11, v12, 5, v11")
            e(f"v_lshl_add_u32 v{VQO}, v8, 4, v11   ; (32w + lane%8)*384 + 32*((lane>>3)&3) + 16h")
        e(f"s_mul_i32 s{sW3}, s{sW}, 3072")
        e(f"s_mov_b32 s{sPROD}, s{sW3}")
        e(f"s_add_u32 s{sPLIM}, s{sW3}, {NS*TILE}")
        if a.xor:
            e(f"s_xor_b32 s2, s2, {a.xor}")
        e(f"s_mul_i32 s{sCUR}, s2, {HEAD_BYTES * a.hmul}")
        self.hstep = a.hstep * HEAD_BYTES
        e("s_waitcnt lgkmcnt(0)")
        for srd, p, n in ((SQ, 4, TENSOR_BYTES), (SK, 6, TENSOR_BYTES), (SV, 8, TENSOR_BYTES), (SO, 10, 0)):
            if a.noload and srd != SO:
                n = 0
            e(f"s_mov_b32 s{srd}, s{p}")
            e(f"s_and_b32 s{srd+1}, s{p+1}, 0xffff")
            e(f"s_mov_b32 s{srd+2}, {n}")
            e(f"s_mov_b32 s{srd+3}, 0x20000")

    def setup2(self):
        e = self.e
        if self.a.m16:
            e("v_and_b32 v7, 15, v1                 ; c")
            e("v_bfe_u32 v9, v7, 3, 1")
            e("v_and_or_b32 v9, v7, 6, v9           ; f(c)")
            e("v_bfe_u32 v10, v1, 4, 1")
            e("v_lshl_or_b32 v10, v10, 1, v8        ; 2*l4 + l5")
            e("v_xor_b32 v9, v9, v10")
            e("v_mul_u32_u24 v10, 384, v7")
            e(f"v_lshl_add_u32 v{VA0}, v9, 4, v10")
            e("v_lshrrev_b32 v7, 2, v1")
            e("v_and_or_b32 v9, v7, 6, v8           ; f(row)")
            e("v_bfe_u32 v10, v1, 1, 1")
            e("v_xor_b32 v9, v9, v10")
            e("v_mul_u32_u24 v10, 384, v7")
            e("v_lshl_add_u32 v10, v9, 4, v10")
            e("v_and_b32 v11, 1, v1")
            e(f"v_lshl_add_u32 v{VB0}, v11, 3, v10")
        else:
            self.setup32()
        self.setup3()

    def setup32(self):
        e = self.e
        e("v_and_b32 v7, 31, v1                 ; m")
        e("v_bfe_u32 v9, v7, 1, 1")
        e("v_lshlrev_b32 v9, 2, v9")
        e("v_bfe_u32 v10, v7, 2, 2")
        e("v_or_b32 v9, v9, v10                 ; f(m)")
        e("v_xor_b32 v9, v9, v8                 ; f(m)^h")
        e("v_mul_u32_u24 v10, 384, v7           ; m*384")
        e(f"v_lshl_add_u32 v{VA0}, v9, 4, v10")
        e("v_bfe_u32 v9, v1, 2, 2               ; r")
        e("v_lshl_add_u32 v10, v8, 2, v9        ; 4h+r")
        e("v_mul_u32_u24 v10, 384, v10")
        e("v_bfe_u32 v11, v1, 1, 1              ; cc>>1")
        e("v_lshl_add_u32 v10, v11, 3, v10      ; base")
        e("v_bfe_u32 v11, v1, 3, 1              ; r>>1")
        e("v_lshlrev_b32 v11, 2, v11")
        e("v_bfe_u32 v12, v1, 4, 1              ; up")
        e("v_lshlrev_b32 v12, 1, v12")
        e("v_and_b32 v13, 1, v1")
        e("v_xor_b32 v13, v13, v8               ; (cc&1)^h")
        e("v_or3_b32 v11, v11, v12, v13         ; x")
        e(f"v_lshl_add_u32 v{VB0}, v11, 4, v10")

    def setup3(self):
        e = self.e
        e(f"s_mov_b32 s{sCONS}, 0")
        e(f"s_mov_b32 s{sREM}, {NH}")
        c = 192 ** -0.5 * math.log2(math.e)
        e(f"s_mov_b32 s{sC}, {f32hex(c)}")
        e(f"s_mov_b32 s{sNC}, {f32hex(-c)}")
        if self.a.m16 and self.a.pkfma:
            e(f"s_mov_b32 s{sC2}, {f32hex(c)}")
            e(f"s_mov_b32 s{sC2+1}, {f32hex(c)}")
        e(f"s_add_u32 s{sNXT}, s{sCUR}, {self.hstep}")
        e(f"s_add_u32 s{sNXT2}, s{sNXT}, 6144")
        e(f"s_mov_b32 s{sPRV}, s{sCUR}")
        e(f"s_mov_b32 s{sPRV2}, s{sCUR}")
        e("s_mov_b32 vcc_lo, 0x00ff00ff")
        e("s_mov_b32 vcc_hi, 0x00ff00ff")

    def addr_calc(self, kind):
        base = VA0 if kind == "K" else VB0
        o = [f"v_add_u32 v{VC}, s{sCONS}, v{base}"]
        o += [f"v_xor_b32 v{VC+u}, {u<<5}, v{VC}" for u in range(1, 4)]
        o += [f"s_add_u32 s{sCONS}, s{sCONS}, {TILE}",
              f"s_cmp_eq_u32 s{sCONS}, {NS*TILE}",
              f"s_cselect_b32 s{sCONS}, 0, s{sCONS}"]
        return o
    def kord(self, jj):
        return (jj % 12, jj // 12) if self.a.kchain else (jj // 2, jj % 2)
    def vord(self, jj):
        if self.a.vchain == 4: return (jj % 4, jj // 4)
        if self.a.vchain == 2: return (2 * (jj // 12) + jj % 2, (jj % 12) // 2)
        return (jj // 6, jj % 6)
    def kord16(self, jj):
        return (jj // 6, jj % 6) if self.a.kchain else (jj % 4, jj // 4)
    def vord16(self, jj):
        return (jj % 2, jj // 2) if self.a.vchain else (jj // 12, jj % 12)
    def item_mfma16(self, kind, j):
        b = FB + 4 * (j % DEPTH)
        tl, jj = j // 24, j % 24
        o = []
        for u in range(2):
            if kind == "K":
                kt, s = self.kord16(jj)
                kt += 4 * tl
                D = S0 + 16 * (kt >> 1) + 8 * u + 4 * (kt & 1)
                first = s == 0
                B = qfrag16(s, u)
            else:
                T, dt = self.vord16(jj)
                D = otile(2 * (dt // 4)) + 16 * u + 4 * (dt % 4)
                first = tl == 0 and T == 0
                B = 8 * (2 * tl + T) + 4 * u
            C = "0" if first else f"v[{D}:{D+3}]"
            o.append(f"v_mfma_f32_16x16x32_bf16 v[{D}:{D+3}], v[{b}:{b+3}], v[{B}:{B+3}], {C}")
        return o
    def item_reads(self, kind, j):
        r = self.item_reads0(kind, j)
        if self.a.dupread and j % self.a.dupread == 0:
            r = [x.replace(f"v[{FB + 4 * (j % DEPTH)}:", f"v[{TR0 - 2}:").replace(f":{FB + 4 * (j % DEPTH) + 3}]", f":{TR0 + 1}]") for x in r[:0]] + r
        return r
    def item_reads0(self, kind, j):
        b = FB + 4 * (j % DEPTH)
        jj = j % 24
        if self.a.m16:
            if kind == "K":
                kt, s = self.kord16(jj)
                return [f"ds_read_b128 v[{b}:{b+3}], v{VC+2*(s&1)} offset:{kt*6144+128*(s>>1)}"]
            T, dt = self.vord16(jj)
            off = T * 12288 + 128 * (dt // 4)
            return [f"ds_read_b64_tr_b16 v[{b}:{b+1}], v{VC+dt%4} offset:{off}",
                    f"ds_read_b64_tr_b16 v[{b+2}:{b+3}], v{VC+dt%4} offset:{off+6144}"]
        if kind == "K":
            s, st = self.kord(jj)
            return [f"ds_read_b128 v[{b}:{b+3}], v{VC+s%4} offset:{st*12288+128*(s//4)}"]
        ks, t = self.vord(jj)
        off = ks * 6144 + (t // 2) * 128
        return [f"ds_read_b64_tr_b16 v[{b}:{b+1}], v{VC+2*(t%2)} offset:{off}",
                f"ds_read_b64_tr_b16 v[{b+2}:{b+3}], v{VC+2*(t%2)+1} offset:{off+3072}"]
    def item_mfma(self, kind, j):
        b = FB + 4 * (j % DEPTH)
        tl, jj = j // 24, j % 24
        if kind == "K":
            s, st = self.kord(jj)
            D = S0 + 16 * (2 * tl + st)
            C = "0" if s == 0 else f"v[{D}:{D+15}]"
            q = qfrag(s)
            return f"v_mfma_f32_32x32x16_bf16 v[{D}:{D+15}], v[{b}:{b+3}], v[{q}:{q+3}], {C}"
        ks, t = self.vord(jj)
        D = otile(t)
        P = 8 * (2 * tl + ks // 2) + 4 * (ks % 2)
        C = "0" if (tl == 0 and ks == 0) else f"v[{D}:{D+15}]"
        return f"v_mfma_f32_32x32x16_bf16 v[{D}:{D+15}], v[{b}:{b+3}], v[{P}:{P+3}], {C}"

    def plain(self, x):
        if isinstance(x, tuple):
            if x[0] == "WAIT": self.wait_for(x[1])
            elif x[0] == "LABEL": self.lab(x[1])
            else: self.vm(*x)
        elif self.a.nocompute and x.startswith(("v_", "ds_")):
            pass
        elif self.a.nomfma and x.startswith("v_mfma"):
            self.e("s_nop 15"); self.e("s_nop 15")
        elif self.a.nosm and x.startswith(("v_exp", "v_fma", "v_add_f32", "v_max3")):
            pass
        elif self.a.nolds and x.startswith("ds_read") and not self.p.inpro:
            pass
        else:
            self.e(x)

    def preread(self, kind):
        for x in self.addr_calc(kind): self.plain(x)
        for j in range(DEPTH):
            for r in self.item_reads(kind, j): self.plain(r)

    def mblock(self, kind, sides, barrier):
        rpf = 1 if kind == "K" else 2
        pend = list(range(DEPTH))
        def req(j):
            for r in self.item_reads(kind, j): self.plain(r)
            pend.append(j)
        for j in range(96):
            tl, jj = j // 24, j % 24
            if j in pend:
                k = pend.index(j)
                if not self.a.nocompute:
                    self.e(f"s_waitcnt lgkmcnt({(len(pend) - k - 1) * rpf})")
                del pend[:k + 1]
            sd = sides.get(j, [])
            if self.a.m16:
                m = self.item_mfma16(kind, j)
                self.plain(m[0])
                h = len(sd) // 2
                for x in sd[:h]: self.plain(x)
                sd = sd[h:]
                self.plain(m[1])
            else:
                self.plain(self.item_mfma(kind, j))
            if jj + DEPTH < 24:
                req(j + DEPTH)
            elif jj == 24 - DEPTH and tl < 3:
                for x in self.addr_calc(kind): self.plain(x)
            if jj == BARPOS:
                barrier(tl)
                pend.clear()
                if tl < 3:
                    for k in range(BARPOS + DEPTH - 23): req(24 * (tl + 1) + k)
            elif jj > BARPOS and tl < 3:
                req(j + DEPTH)
            for x in sd:
                self.plain(x)

    def max_list(self, tiles, first):
        o = []
        vals = [16 * t + i for t in tiles for i in range(16)]
        if self.a.m16:
            v0 = [r for r in vals if not r & 8]; v1 = [r for r in vals if r & 8]
            vals = [x for i in range(0, len(v0), 2) for x in (v0[i], v0[i+1], v1[i], v1[i+1])]
        k = 0
        if first:
            o.append(f"v_max_f32 v{MX}, v{vals[0]}, v{vals[1]}")
            o.append(f"v_max_f32 v{MX+1}, v{vals[2]}, v{vals[3]}")
            k = 4
        ch = 0
        while k < len(vals):
            o.append(f"v_max3_f32 v{MX+ch}, v{MX+ch}, v{vals[k]}, v{vals[k+1]}")
            ch ^= 1
            k += 2
        return o

    def softmax16(self, maxdone):
        a = self.a
        o = []
        e = o.append
        M, NEG = MX, MX + 2
        SUM = [MX, MX + 4]
        o += self.max_list(list(range(maxdone, 8)), maxdone == 0)
        def allred(op, x, y, fin):
            e("s_nop 1")
            e(f"v_permlane32_swap_b32 v{x}, v{y}")
            e(f"{op} v{x}, v{x}, v{y}")
            e(f"v_mov_b32 v{y}, v{x}")
            e("s_nop 1")
            e(f"v_permlane16_swap_b32 v{x}, v{y}")
            e(f"{op} v{x}, v{x}, v{y}")
            d = fin(x)
            e(f"v_mov_b32 v{d+1}, v{d}")
            e("s_nop 1")
            e(f"v_permlane32_swap_b32 v{d}, v{d+1}")
        def negf(x):
            e(f"v_mul_f32 v{NEG}, s{sNC}, v{x}"); return NEG
        allred("v_max_f32", M, M + 1, negf)
        U = lambda i: (i >> 2) & 1
        def fma(i):
            u = U(i)
            if a.pkfma:
                e(f"v_pk_fma_f32 v[{2*i}:{2*i+1}], v[{2*i}:{2*i+1}], s[{sC2}:{sC2+1}], v[{NEG}:{NEG+1}] op_sel:[0,0,{u}] op_sel_hi:[1,1,{u}]")
            else:
                e(f"v_fma_f32 v{2*i}, v{2*i}, s{sC}, v{NEG+u}")
                e(f"v_fma_f32 v{2*i+1}, v{2*i+1}, s{sC}, v{NEG+u}")
        def ex(i):
            e(f"v_exp_f32 v{2*i}, v{2*i}")
            e(f"v_exp_f32 v{2*i+1}, v{2*i+1}")
        def fin(i):
            S = SUM[U(i)]
            if i in (0, 4):
                e(f"v_mov_b32 v{S}, v{2*i}")
                e(f"v_mov_b32 v{S+1}, v{2*i+1}")
            elif a.pkadd:
                e(f"v_pk_add_f32 v[{S}:{S+1}], v[{S}:{S+1}], v[{2*i}:{2*i+1}]")
            else:
                e(f"v_add_f32 v{S}, v{S}, v{2*i}")
                e(f"v_add_f32 v{S+1}, v{S+1}, v{2*i+1}")
            e(f"v_cvt_pk_bf16_f32 v{i}, v{2*i}, v{2*i+1}")
        fma(0); fma(1); ex(0)
        for i in range(64):
            if i + 2 < 64: fma(i + 2)
            if i + 1 < 64: ex(i + 1)
            else: e("s_nop 0")
            fin(i)
        e(f"v_add_f32 v{SUM[0]}, v{SUM[0]}, v{SUM[0]+1}")
        e(f"v_add_f32 v{SUM[0]+1}, v{SUM[1]}, v{SUM[1]+1}")
        def invf(x):
            e(f"v_rcp_f32 v{INV}, v{x}"); e("s_nop 0"); return INV
        allred("v_add_f32", SUM[0], SUM[0] + 1, invf)
        return o

    def softmax_list(self, maxdone):
        a = self.a
        if a.m16: return self.softmax16(maxdone)
        o = []
        e = o.append
        M, NEG, SUM = MX, MX + 2, MX + 4
        o += self.max_list(list(range(maxdone, 8)), maxdone == 0)
        e(f"v_max_f32 v{M}, v{M}, v{M+1}")
        e(f"v_mov_b32 v{M+1}, v{M}")
        e("s_nop 1")
        e(f"v_permlane32_swap_b32 v{M}, v{M+1}")
        e(f"v_max_f32 v{M}, v{M}, v{M+1}")
        e(f"v_mul_f32 v{NEG}, s{sNC}, v{M}")
        if a.pkfma:
            e(f"v_mov_b32 v{NEG+1}, s{sC}")
        def fma(i):
            if a.pkfma:
                e(f"v_pk_fma_f32 v[{2*i}:{2*i+1}], v[{2*i}:{2*i+1}], v[{NEG}:{NEG+1}], v[{NEG}:{NEG+1}] op_sel:[0,1,0] op_sel_hi:[1,1,0]")
            else:
                e(f"v_fma_f32 v{2*i}, v{2*i}, s{sC}, v{NEG}")
                e(f"v_fma_f32 v{2*i+1}, v{2*i+1}, s{sC}, v{NEG}")
        def ex(i):
            e(f"v_exp_f32 v{2*i}, v{2*i}")
            e(f"v_exp_f32 v{2*i+1}, v{2*i+1}")
        def fin(i):
            if i == 0:
                e(f"v_mov_b32 v{SUM}, v0")
                e(f"v_mov_b32 v{SUM+1}, v1")
            elif a.pkadd:
                e(f"v_pk_add_f32 v[{SUM}:{SUM+1}], v[{SUM}:{SUM+1}], v[{2*i}:{2*i+1}]")
            else:
                e(f"v_add_f32 v{SUM}, v{SUM}, v{2*i}")
                e(f"v_add_f32 v{SUM+1}, v{SUM+1}, v{2*i+1}")
            e(f"v_cvt_pk_bf16_f32 v{i}, v{2*i}, v{2*i+1}")
        fma(0); fma(1); ex(0)
        for i in range(64):
            if i + 2 < 64: fma(i + 2)
            if i + 1 < 64: ex(i + 1)
            else: e("s_nop 0")
            fin(i)
        e(f"v_add_f32 v{SUM}, v{SUM}, v{SUM+1}")
        e(f"v_mov_b32 v{SUM+1}, v{SUM}")
        e("s_nop 1")
        e(f"v_permlane32_swap_b32 v{SUM}, v{SUM+1}")
        e(f"v_add_f32 v{SUM}, v{SUM}, v{SUM+1}")
        e(f"v_rcp_f32 v{INV}, v{SUM}")
        return o

    def ochunk_list(self, cc):
        o = []
        b = otile(2 * cc)
        for i in range(4):
            if self.a.pkmul:
                for k in range(4):
                    r = b + 8 * i + 2 * k
                    u = (i >> 1) if self.a.m16 else 0
                    o.append(f"v_pk_mul_f32 v[{r}:{r+1}], v[{r}:{r+1}], v[{INV}:{INV+1}] op_sel:[0,{u}] op_sel_hi:[1,{u}]")
            else:
                for k in range(8):
                    o.append(f"v_mul_f32 v{b+8*i+k}, v{b+8*i+k}, v{INV + ((i >> 1) if self.a.m16 else 0)}")
            for k in range(4):
                o.append(f"v_cvt_pk_bf16_f32 v{b+4*i+k}, v{b+8*i+2*k}, v{b+8*i+2*k+1}")
        o += self.transp([b, b + 4, b + 8, b + 12], b + 16)
        return o
    def qt_list(self, cc):
        return self.transp([qslot(x) for x in QLD[cc]], qslot(QTMP[cc]), True)

    def vblock(self, lst, nparts, groups, barrier, nxt, tail):
        n = len(lst)
        cs = [0]
        for s in lst: cs.append(cs[-1] + (cost(s) if isinstance(s, str) else 0))
        lastpos = max(n - tail, 0)
        tot = cs[lastpos]
        cuts = []
        for p in range(1, nparts):
            cuts.append(min(i for i in range(n + 1) if cs[i] >= tot * p / nparts))
        cuts.append(lastpos)
        lo = 0
        ins = {}
        for p, hi in enumerate(cuts):
            g = groups[p]
            for k, grp in enumerate(g):
                ins.setdefault(lo + int(k * (hi - lo) * self.a.front) // len(g), []).extend(grp)
            lo = hi
        for i in range(n + 1):
            if i in cuts:
                for p, cpos in enumerate(cuts):
                    if cpos == i:
                        barrier(p)
                        if p == nparts - 1 and nxt: self.preread(nxt)
            for x in ins.get(i, []): self.plain(x)
            if i < n: self.plain(lst[i])

    def group(self, name, lag):
        e, a = self.e, self.a
        phases = self.phases
        n = len(phases)
        p = self.p
        def dma_groups(g, pro):
            out = []
            for (t, ha) in self.issue[name].get(g % n, []):
                if pro:
                    out.append(self.dma_list(t, 0, 0)); assert ha == 0
                else:
                    rel = ha + (1 if g >= n else 0)
                    assert rel in (0, 1), (name, g, t, ha)
                    d = self.dma_list(t, rel, rel)
                    if g > n:
                        self.nlab += 1
                        d = [d[0], f"s_cbranch_scc1 L_nd{self.nlab}"] + d[2:] + [("LABEL", f"L_nd{self.nlab}")]
                    out.append(d)
            return out
        def end_interval(g, pro):
            self.trace(TR0)
            for (t, ha) in self.cert.get(g % n, []):
                self.wait_for(("T", t, ha if pro else ha + (1 if g >= n else 0)))
            if a.pace >= 0 and a.pacelo <= g <= a.pacehi:
                if pro:
                    e(f"s_waitcnt vmcnt({a.pace})")
                else:
                    self.nlab += 1
                    e(f"s_cmp_lg_u32 s{sREM}, {NH}")
                    e(f"s_cbranch_scc1 L_np{self.nlab}")
                    e(f"s_waitcnt vmcnt({a.pace})")
                    self.lab(f"L_np{self.nlab}")
            e("s_waitcnt lgkmcnt(0)")
            if not pro and g >= n:
                self.nlab += 1
                e(f"s_cmp_eq_u32 s{sREM}, 1")
                e(f"s_cbranch_scc1 L_nb{self.nlab}")
                e("s_barrier")
                self.lab(f"L_nb{self.nlab}")
            else:
                e("s_barrier")
            self.trace(TR1, True)
        pt = self.pro_tiles[name]
        qa = a.qatA if name == "A" else a.qatB
        order = pt[:qa] + ["Q"] + pt[qa:]
        es = [x.split(",") if x else [] for x in a.es.split(";")] if a.es else None
        if es:
            order = [0, "Q"] if name == "A" else [0]
        for step in order:
            if step == "Q":
                e(f"s_add_u32 s{sT}, s{sCUR}, 6144")
                for k in range(12):
                    self.vm(*self.qload(k, sCUR, sT, 0))
            else:
                for x in self.dma_list(step, 0, 0): self.emit(x)
        if es and name == "A":
            e(f"s_add_u32 s{sPROD}, s{sPROD}, {TILE * (len(pt) - 1)}")
        self.setup2()
        if es and name == "B":
            e(f"s_add_u32 s{sPRV2}, s{sCUR}, 6144")
        self.wait_for(("T", 0, 0))
        e("s_barrier")
        qn, tdone = 0, []
        pf = [int(x) for x in a.pf.split(",")] if (a.pf and lag) else []
        if pf:
            e("v_lshlrev_b32 v14, 4, v1")
        done = 0
        for g in range(lag):
            for tok in (es[g] if es else []):
                if tok[0] == "K":
                    t = int(tok[1])
                    if t in self.pro_tiles["A"]:
                        e(f"s_sub_u32 m0, s{sPROD}, 12288")
                        e(f"s_add_u32 s{sT}, s{sCUR}, {t * TILE - 12288}")
                        for i in range(3):
                            of = f" offset:{1024*i}" if i else ""
                            self.vm(f"buffer_load_dwordx4 v{VD+i}, s[{SK}:{SK+3}], s{sT} offen{of}{self.ld} lds", ("T", t, 0))
                    for x in self.dma_list(t, 0, 0): self.emit(x)
                elif tok[0] == "Q":
                    for k in range(int(tok[1:])):
                        self.vm(*self.qload(qn, sCUR, sPRV2, 0)); qn += 1
            for grp, (t, _) in zip(dma_groups(g, True), self.issue[name].get(g % n, [])):
                if es and t <= 3: continue
                for x in grp: self.emit(x)
            for tok in (es[g] if es else []):
                if tok[0] == "T":
                    cc = int(tok[1]); tdone.append(cc)
                    self.wait_for(("Q", cc, 0))
                    for x in self.qt_list(cc): self.plain(x)
            if pf and pf[g]:
                srd = {"Q": SQ, "K": SK, "V": SV}[a.pfsrc]
                e(f"s_sub_u32 s{sT}, s{sW}, 4")
                e(f"s_mul_i32 s{sT}, s{sT}, {1024 * pf[g]}")
                e(f"s_add_u32 s{sT}, s{sT}, s{sNXT}")
                if done: e(f"s_add_u32 s{sT}, s{sT}, {done}")
                fl = "".join(" " + x for x in a.pfld.split(",") if x)
                for k in range(pf[g]):
                    if k == 4: e(f"s_add_u32 s{sT}, s{sT}, 4096")
                    of = f" offset:{1024 * (k % 4)}" if k % 4 else ""
                    self.vm(f"buffer_load_dwordx4 v[{XR}:{XR+3}], v14, s[{srd}:{srd+3}], s{sT} offen{of}{fl}", ("P", g, 0))
                done += 4 * 1024 * pf[g]
                assert done <= HEAD_BYTES and pf[g] <= 8
            end_interval(g, True)
        assert not (es and lag) or qn == 12
        self.preread("K")
        for cc in range(3):
            if cc in tdone: continue
            self.wait_for(("Q", cc, 0))
            for s in self.qt_list(cc): self.plain(s)
        p.inpro = False
        self.o.append(".p2align 6")
        self.lab(f"L_head{name}{self.sfx}")
        self.htrace()
        place = dict(x.split(":") for x in (a.placeA if name == "A" else a.placeB).split(","))
        qdist = dict(zip(phases, [int(x) for x in (a.qdistA if name == "A" else a.qdistB).split(",")]))
        assert sum(qdist.values()) == 12
        qk = [4 * cc + j for j in range(4) for cc in range(3)] if a.qord == "j" else list(range(12))
        ql = [self.qload(k, sNXT, sNXT2, 1) for k in qk]
        qpre = [f"s_cmp_eq_u32 s{sREM}, 1", f"s_cselect_b32 s{SQ+2}, 0, s{SQ+2}"]
        units = {}
        for cc in range(3):
            units[f"O{cc}"] = self.ochunk_list(cc)
            units[f"T{cc}"] = [("WAIT", ("Q", cc, 1))] + self.qt_list(cc)
        wdist = dict(zip(phases, [int(x) for x in (a.wdistA if name == "A" else a.wdistB).split(",")]))
        assert sum(wdist.values()) == 12
        idx = {ph: i for i, ph in enumerate(phases)}
        e0 = idx["E0"]
        cyc = lambda ph: (idx[ph] - e0) % n
        wl = [(cc, j) for cc in range(3) for j in range(4)]
        if a.word == "j": wl = [(cc, j) for j in range(4) for cc in range(3)]
        wat = {}
        for ph in sorted(phases, key=cyc):
            wat[ph] = [wl.pop(0) for _ in range(wdist[ph])]
            for (cc, j) in wat[ph]:
                assert cyc(ph) > cyc(place[f"O{cc}"]), ("store before its chunk", ph, cc)
                lastok = ("K1", "K2", [x for x in phases if x[0] == "S"][-1])[cc]
                assert cyc(ph) <= cyc(lastok), ("store too late", ph, cc)
        mem, val = {}, {}
        for pi, ph in enumerate(phases):
            g = dma_groups(pi + lag, False)
            for k in range(qdist[ph]):
                g.append((qpre if len(ql) == 12 else []) + [ql.pop(0)])
            g += [[self.ostore(cc, j, -1 if ph[0] != "E" else 0)] for (cc, j) in wat[ph]]
            mem[ph] = g
            v = []
            for u in ("O0", "O1", "O2", "T0", "T1", "T2"):
                if place[u] == ph: v += units[u]
            val[ph] = v
        def msides(kind):
            sides = {}
            for tl in range(4):
                ph = f"{kind}{tl}"
                lo, hi = (24 * tl - 2 if tl else 0), 24 * tl + BARPOS - 1
                v = list(val[ph])
                if kind == "K" and a.maxk and tl >= 1:
                    v = v + self.max_list([2 * tl - 2, 2 * tl - 1], tl == 1)
                vlo = 24 * tl + 5 if (kind == "K" and a.maxk and tl >= 1 and not val[ph]) else lo
                for k, s in enumerate(v):
                    sides.setdefault(vlo + (k * (hi - vlo + 1)) // len(v), []).append(s)
                g = mem[ph]
                for k, grp in enumerate(g):
                    sides.setdefault(lo + int(k * (hi - lo + 1) * a.front) // len(g), []).extend(grp)
            return sides
        nsm = sum(1 for x in phases if x[0] == "S")
        nem = sum(1 for x in phases if x[0] == "E")
        self.c(f"---- {name}: K block")
        if a.prio: e(f"s_setprio {a.prio}")
        self.mblock("K", msides("K"), lambda t: end_interval(idx[f"K{t}"] + lag, False))
        self.c(f"---- {name}: softmax")
        if a.prio: e("s_setprio 0")
        e("s_nop 7")
        e("s_nop 2")
        self.vblock(self.softmax_list(6 if a.maxk else 0), nsm, [mem[f"S{i}"] for i in range(nsm)],
                    lambda i: end_interval(idx[f"S{i}"] + lag, False), "V", a.tail)
        self.c(f"---- {name}: V block")
        self.htrace()
        if a.prio: e(f"s_setprio {a.prio}")
        self.mblock("V", msides("V"), lambda t: end_interval(idx[f"V{t}"] + lag, False))
        self.c(f"---- {name}: E")
        if a.prio: e("s_setprio 0")
        e(f"s_mov_b32 s{sPRV}, s{sCUR}")
        e(f"s_add_u32 s{sPRV2}, s{sCUR}, 6144")
        e(f"s_mov_b32 s{SO+2}, {0 if a.nostore else TENSOR_BYTES}")
        e("s_nop 3")
        for i in range(nem):
            last = i == nem - 1
            self.vblock(val[f"E{i}"], 1, [mem[f"E{i}"]], lambda _: end_interval(idx[f"E{i}"] + lag, False),
                        "K" if last else None, a.tail if last else 0)
        e(f"s_mov_b32 s{sCUR}, s{sNXT}")
        e(f"s_add_u32 s{sNXT}, s{sNXT}, {self.hstep}")
        e(f"s_add_u32 s{sNXT2}, s{sNXT}, 6144")
        e(f"s_sub_u32 s{sREM}, s{sREM}, 1")
        e(f"s_cmp_lg_u32 s{sREM}, 0")
        e(f"s_cbranch_scc1 L_head{name}{self.sfx}")
        self.c("---- last head: what the next head's K block would have done")
        done = [x for ph in phases if ph[0] == "E" for x in wat[ph]]
        for cc in range(3):
            if place[f"O{cc}"][0] != "E":
                for x in units[f"O{cc}"]: self.plain(x)
            for j in range(4):
                if (cc, j) not in done: e(self.ostore(cc, j, 0)[0])

    def check_schedule(self, name):
        n, lag = len(self.phases), self.a.lag
        rd = {int(ph[1]) + (4 if ph[0] == "V" else 0): i for i, ph in enumerate(self.phases) if ph[0] in "KV"}
        iss, cer = {}, {}
        for h in range(-1, 4):
            for g in range(n):
                for (t, ha) in self.issue[name].get(g, []): iss[8 * (h + ha) + t] = n * h + g
                for (t, ha) in self.cert.get(g, []): cer[8 * (h + ha) + t] = n * h + g
        order = sorted(iss, key=lambda x: (iss[x], x))
        assert order == sorted(order), "issue order must be stream order"
        for x in range(8, 24):
            h, t = divmod(x, 8)
            ra = n * h + rd[t]
            assert cer[x] < ra, ("cert", x)
            assert iss[x] <= cer[x], ("iss/cert", x)
            ho, to = divmod(x - NS, 8)
            assert iss[x] > n * ho + rd[to] + lag, ("slot", x, iss[x], n * ho + rd[to] + lag)
        self.pro_tiles[name] = [t for t in range(8) if iss[t] < 0]
        assert self.pro_tiles[name] == list(range(len(self.pro_tiles[name])))
        for t in range(1, 8):
            assert cer[t] >= 0, ("first-head cert", t)

    def schedule(self):
        a = self.a
        self.phases = a.phases.split(",")
        n = len(self.phases)
        rd = {int(ph[1]) + (4 if ph[0] == "V" else 0): i for i, ph in enumerate(self.phases) if ph[0] in "KV"}
        self.issue, self.cert, self.pro_tiles = {"A": {}, "B": {}}, {}, {}
        for name, dd in (("A", a.dist), ("B", a.distB or a.dist)):
            dist = [int(x) for x in dd.split(",")]
            for t in range(8):
                g = rd[t] - dist[t]
                self.issue[name].setdefault(g % n, []).append((t, 1 if g < 0 else 0))
            for g in self.issue[name]: self.issue[name][g].sort(key=lambda x: (x[1], x[0]))
        for t in range(8):
            g = rd[t] - 1
            self.cert.setdefault(g % n, []).append((t, 1 if g < 0 else 0))
        for name in "AB": self.check_schedule(name)

    def build(self, odd=None):
        e, a = self.e, self.a
        lds = NS * TILE
        self.o.append(HEADER + f"; @launch grid=(256,1,1) block=(512,1,1) lds={lds}")
        self.o.append('.amdgcn_target "amdgcn-amd-amdhsa--gfx950"')
        self.o.append(".text")
        self.o.append(f".globl {NAME}_kernel")
        self.o.append(".p2align 8")
        self.o.append(f".type {NAME}_kernel,@function")
        self.lab(f"{NAME}_kernel")
        self.p = Path()
        self.prologue()
        common = list(self.p.pro)
        paths = []
        variants = [("", a)] + ([("o", odd)] if odd else [])
        if odd:
            e(f"s_getreg_b32 s{sT}, hwreg(HW_REG_XCC_ID)")
            e(f"s_bitcmp1_b32 s{sT}, 0")
            e("s_cbranch_scc1 L_varo")
        for sfx, va in variants:
            self.a = va
            self.schedule()
            if sfx: self.lab("L_var" + sfx)
            e(f"s_cmp_ge_u32 s{sW}, 4")
            e(f"s_cbranch_scc1 L_grpB{sfx}")
            for name, lag in (("A", 0), ("B", va.lag)):
                if name == "B": self.lab("L_grpB" + sfx)
                self.p = Path(); self.p.pro = list(common)
                self.sfx = sfx
                self.group(name, lag)
                paths.append(self.p)
                if not (name == "B" and va is variants[-1][1]): e("s_branch L_fin")
        self.a = a
        self.lab("L_fin")
        if a.dbg:
            e("s_waitcnt vmcnt(0)")
            self.htrace()
            e(f"s_cmp_lg_u32 s{sW}, {a.dbg - 1}")
            e("s_cbranch_scc1 L_end")
            e("s_mov_b32 s60, s48")
            e("s_and_b32 s61, s49, 0xffff")
            e("s_mov_b32 s62, 256")
            e("s_mov_b32 s63, 0x20000")
            e("v_mbcnt_lo_u32_b32 v8, -1, 0")
            e("v_lshlrev_b32 v8, 2, v8")
            e(f"v_subrev_u32 v0, s50, v{TR0}")
            e("s_sub_u32 s68, s68, s52")
            e("s_lshr_b32 s68, s68, 4")
            e("v_writelane_b32 v0, s68, 9")
            e("s_not_b32 s50, s50")
            e("v_mov_b32 v1, s64")
            e("v_writelane_b32 v1, s50, 0")
            e("s_mov_b64 exec, 0x3ff")
            e("buffer_atomic_add v0, v8, s[60:63], 0 offen offset:8")
            e("s_mov_b64 exec, 3")
            e("buffer_atomic_umax v1, v8, s[60:63], 0 offen")
        if a.stamp:
            e("s_waitcnt vmcnt(0)")
            e("s_memrealtime s[54:55]")
            e("s_memtime s[56:57]")
            e("s_getreg_b32 s58, hwreg(HW_REG_XCC_ID)")
            e("s_getreg_b32 s67, hwreg(HW_REG_HW_ID)")
            e("s_waitcnt lgkmcnt(0)")
            e(f"s_lshl_b32 s59, s2, 3")
            e(f"s_add_u32 s59, s59, s{sW}")
            e(f"s_lshl_b32 s59, s59, 5")
            e("s_mov_b32 s60, s48")
            e("s_and_b32 s61, s49, 0xffff")
            e("s_mov_b32 s62, 65536")
            e("s_mov_b32 s63, 0x20000")
            for k, r in enumerate((50, 51, 54, 55, 52, 56, 58, 67)):
                e(f"v_mov_b32 v{k}, s{r}")
            e("v_mov_b32 v8, 0")
            e("s_mov_b64 exec, 1")
            e("buffer_store_dwordx4 v[0:3], v8, s[60:63], s59 offen")
            e("buffer_store_dwordx4 v[4:7], v8, s[60:63], s59 offen offset:16")
            if a.trace or a.htrace or a.rtrace:
                e("s_mov_b64 exec, -1")
                e("s_mov_b32 s62, 0x1000000")
                e("v_mbcnt_lo_u32_b32 v8, -1, 0")
                e("v_mbcnt_hi_u32_b32 v8, -1, v8")
                e("v_lshlrev_b32 v8, 2, v8")
                e("s_lshl_b32 s59, s59, 4")
                e("s_add_u32 s59, s59, 65536")
                e(f"buffer_store_dword v{TR0}, v8, s[60:63], s59 offen")
                e(f"buffer_store_dword v{TR1}, v8, s[60:63], s59 offen offset:256")
        e("s_waitcnt vmcnt(0)")
        self.lab("L_end")
        e("s_endpgm")
        for p in paths: self.resolve_waits(p)
        self.o.append(f""".section .rodata,"a"
.p2align 6
.amdhsa_kernel {NAME}_kernel
  .amdhsa_next_free_vgpr {NV}
  .amdhsa_next_free_sgpr 72
  .amdhsa_accum_offset {NV}
  .amdhsa_group_segment_fixed_size 0
  .amdhsa_kernarg_size 48
  .amdhsa_user_sgpr_count 2
  .amdhsa_user_sgpr_kernarg_segment_ptr 1
  .amdhsa_system_sgpr_workgroup_id_x 1
.end_amdhsa_kernel
""")
        return "\n".join(self.o)

    def resolve_waits(self, p):
        for (idx, tag, inpro, pos) in p.waits:
            c = []
            if inpro:
                seq = p.pro[:pos]
                last = max(i for i, t in enumerate(seq) if t == tag)
                c.append(len(seq) - 1 - last)
            else:
                for it in range(NH):
                    seq = list(p.pro)
                    for j in range(it + 1):
                        b = p.body if j < it else p.body[:pos]
                        seq += [(k, x, h + j) for (k, x, h) in b]
                    want = (tag[0], tag[1], tag[2] + it)
                    if it == 0 and want not in seq: continue
                    last = max(i for i, t in enumerate(seq) if t == want)
                    c.append(len(seq) - 1 - last)
            nn = min(c)
            assert nn <= 63
            self.o[idx] = f"    s_waitcnt vmcnt({nn})"

if __name__ == "__main__":
    ap = argparse.ArgumentParser()
    ap.add_argument("-o", default=f"cdna_kernels/{NAME}.s")
    ap.add_argument("--ld", default="nt")
    ap.add_argument("--ldq", default=None)
    ap.add_argument("--st", default="")
    ap.add_argument("--win", type=int, default=0)
    ap.add_argument("--qord", default="c")
    ap.add_argument("--word", default="c")
    ap.add_argument("--dbg", type=int, default=0)
    ap.add_argument("--pace", type=int, default=-1)
    ap.add_argument("--pacelo", type=int, default=0)
    ap.add_argument("--pacehi", type=int, default=15)
    ap.add_argument("--front", type=float, default=1.0)
    ap.add_argument("--es", default="")
    ap.add_argument("--qatA", type=int, default=1)
    ap.add_argument("--qatB", type=int, default=9)
    ap.add_argument("--pf", default="")
    ap.add_argument("--pfsrc", default="Q")
    ap.add_argument("--pfld", default="")
    ap.add_argument("--vchain", type=int, default=0)
    ap.add_argument("--dupread", type=int, default=0)
    ap.add_argument("--xor", type=int, default=0)
    ap.add_argument("--hmul", type=int, default=1)
    ap.add_argument("--hstep", type=int, default=256)
    ap.add_argument("--lag", type=int, default=4)
    ap.add_argument("--prio", type=int, default=0)
    ap.add_argument("--tail", type=int, default=24)
    ap.add_argument("--phases", default="K0,K1,K2,K3,S0,S1,S2,S3,V0,V1,V2,V3,E0,E1,E2,E3")
    ap.add_argument("--dist", default="7,6,5,4,7,6,5,4")
    ap.add_argument("--distB", default="6,5,4,3,6,5,4,3")
    ap.add_argument("--wdistA", default="3,0,0,0,0,0,0,0,0,0,0,0,0,3,3,3")
    ap.add_argument("--wdistB", default="3,0,0,0,0,0,0,0,0,0,0,0,0,3,3,3")
    ap.add_argument("--qdistA", default="0,0,0,0,0,3,3,3,3,0,0,0,0,0,0,0")
    ap.add_argument("--qdistB", default="0,0,0,0,0,3,3,3,3,0,0,0,0,0,0,0")
    ap.add_argument("--placeA", default="O0:E0,O1:E1,O2:E2,T0:E3,T1:E3,T2:E3")
    ap.add_argument("--placeB", default="O0:E0,O1:E1,O2:E2,T0:E3,T1:E3,T2:E3")
    for k in ("nocompute", "nostore", "stamp", "noload", "trace", "htrace", "rtrace", "pkfma", "pkadd", "pkmul", "maxk", "kchain", "nomfma", "nosm", "nolds", "m16"):
        ap.add_argument("--" + k, action="store_true")
    ap.add_argument("--odd", default=None)
    a = ap.parse_args()
    if a.dbg: a.htrace = True
    odd = None
    if a.odd is not None:
        odd = ap.parse_args(sys.argv[1:] + a.odd.split())
    open(a.o, "w").write(G(a).build(odd))
```

```python
import struct, math, sys, argparse

NAME = "standalone__mha_softmax__near_ridge"
HEAD_BYTES = 256 * 384
TENSOR_BYTES = 1024 * HEAD_BYTES
TILE = 64 * 384
NS = 6
NH = 4
DEPTH = 6
BARPOS = 20

def f32hex(x):
    return "0x%08x" % struct.unpack("<I", struct.pack("<f", x))[0]

HEADER = """; Kernarg layout for this problem (48 bytes, ptrs only, base s[0:1]):
"""

S0 = 0
QR = 128
XR = 180
FB = 212
TR0, TR1 = 236, 237
MX = 238
VD = 244
VA0 = 247
VB0 = 248
VC = 249
VQO = 253
INV = 254
SUMD = 236
NV = 256

SQ, SK, SV, SO = 12, 16, 20, 24
sC2 = 46
sW, sW3, sCUR, sNXT, sPROD, sCONS, sREM, sC, sNC, sT, sNXT2, sPRV, sPRV2, sPLIM = range(32, 46)

def otile(t):
    return 64 + 16 * t if t < 4 else XR + 16 * (t - 4)
def qslot(n):
    return QR + 4 * n
QLD = [[1 + 4 * cc + j for j in range(4)] for cc in range(3)]
QTMP = [0, 3, 7]
QFIN = [[QTMP[cc], QLD[cc][1], QLD[cc][0], QLD[cc][3]] for cc in range(3)]
def qfrag(s):
    return qslot(QFIN[s // 4][s % 4])
def qfrag16(s, u):
    return qslot(QFIN[s >> 1][2 * u + (s & 1)])

def cost(s):
    return 2 if s.startswith("v_exp") or s.startswith("v_rcp") else 1

class Path:
    def __init__(self):
        self.pro, self.body, self.waits, self.inpro = [], [], [], True

class G:
    def __init__(self, a):
        self.a = a
        fl = lambda s: "".join(" " + x for x in s.split(",") if x)
        self.ld, self.st, self.ldq = fl(a.ld), fl(a.st), fl(a.ldq if a.ldq is not None else a.ld)
        self.o = []
        self.nlab = 0
        self.common = []
        self.p = None
    def e(self, s):
        self.o.append("    " + s)
    def lab(self, s):
        self.o.append(s + ":")
    def c(self, s):
        self.o.append("    ; " + s)
    def vm(self, s, tag):
        if self.a.win and not self.p.inpro:
            self.e(f"s_waitcnt vmcnt({self.a.win - 1})")
        self.e(s)
        (self.p.pro if self.p.inpro else self.p.body).append(tag)
    def emit(self, x):
        if isinstance(x, tuple): self.vm(*x)
        else: self.e(x)
    def wait_for(self, tag):
        self.o.append(None)
        p = self.p
        p.waits.append((len(self.o) - 1, tag, p.inpro, len(p.pro) if p.inpro else len(p.body)))

    def trace(self, vreg, inc=False):
        if self.a.rtrace and inc:
            self.a.htrace = True; self.htrace(); self.a.htrace = False
        if not self.a.trace:
            return
        e = self.e
        e("s_memtime s[64:65]")
        e("s_mov_b32 m0, s66")
        e("s_waitcnt lgkmcnt(0)")
        e(f"v_writelane_b32 v{vreg}, s64, m0")
        if inc:
            e("s_add_u32 s66, s66, 1")

    def htrace(self):
        if not self.a.htrace:
            return
        e = self.e
        e("s_memrealtime s[64:65]")
        e("s_memtime s[68:69]")
        e("s_mov_b32 m0, s66")
        e("s_waitcnt lgkmcnt(0)")
        e(f"v_writelane_b32 v{TR0}, s64, m0")
        e(f"v_writelane_b32 v{TR1}, s68, m0")
        e("s_add_u32 s66, s66, 1")

    def dma_list(self, t, rel, hd):
        srd = SK if t < 4 else SV
        headreg = sNXT if rel else sCUR
        off = (t % 4) * TILE
        o = []
        if rel:
            o += [f"s_cmp_eq_u32 s{sREM}, 1", f"s_cselect_b32 s{srd+2}, 0, s{srd+2}"]
        o.append(f"s_mov_b32 m0, s{sPROD}")
        if off:
            o.append(f"s_add_u32 s{sT}, s{headreg}, {off}")
            so = sT
        else:
            o.append("s_nop 0")
            so = headreg
        for i in range(3):
            of = f" offset:{1024*i}" if i else ""
            o.append((f"buffer_load_dwordx4 v{VD+i}, s[{srd}:{srd+3}], s{so} offen{of}{self.ld} lds", ("T", t, hd)))
        o += [f"s_add_u32 s{sPROD}, s{sPROD}, {TILE}",
              f"s_cmp_eq_u32 s{sPROD}, s{sPLIM}",
              f"s_cselect_b32 s{sPROD}, s{sW3}, s{sPROD}"]
        return o
    def qload(self, k, h0, h1, hd):
        cc, j = k // 4, k % 4
        r = qslot(QLD[cc][j])
        so = h1 if j >= 2 else h0
        off = (j & 1) * 3072 + 128 * cc
        o = f" offset:{off}" if off else ""
        return (f"buffer_load_dwordx4 v[{r}:{r+3}], v{VQO}, s[{SQ}:{SQ+3}], s{so} offen{o}{self.ldq}", ("Q", cc, hd))
    def oregs(self, cc):
        b = otile(2 * cc)
        return [b + 16, b + 4, b + 0, b + 12]
    def ostore(self, cc, j, hd):
        r = self.oregs(cc)[j]
        so = sPRV2 if j >= 2 else sPRV
        off = (j & 1) * 3072 + 128 * cc
        o = f" offset:{off}" if off else ""
        return (f"buffer_store_dwordx4 v[{r}:{r+3}], v{VQO}, s[{SO}:{SO+3}], s{so} offen{o}{self.st}", ("O", cc, hd))

    def transp(self, L, T, isq=False):
        out = []
        for (a, b, d) in ((L[0], L[1], T), (L[2], L[3], L[0])):
            for k in range(4):
                out.append(f"v_cndmask_b32_dpp v{d+k}, v{b+k}, v{a+k}, vcc row_ror:8 row_mask:0xf bank_mask:0xf")
            for k in range(4):
                out.append(f"v_mov_b32_dpp v{b+k}, v{a+k} row_ror:8 row_mask:0xf bank_mask:0x3")
        F = [T, L[1], L[0], L[3]]
        if self.a.m16:
            if not isq:
                for q in (F[0], F[1], F[2], F[3]):
                    out.append(f"v_permlane16_swap_b32 v{q}, v{q+2}")
                    out.append(f"v_permlane16_swap_b32 v{q+1}, v{q+3}")
            return out
        for (a, b) in ((F[0], F[2]), (F[1], F[3])):
            for k in range(4):
                out.append(f"v_permlane16_swap_b32 v{a+k}, v{b+k}")
        return out

    def adv_cons(self):
        e = self.e
        e(f"s_add_u32 s{sCONS}, s{sCONS}, {TILE}")
        e(f"s_cmp_eq_u32 s{sCONS}, {NS*TILE}")
        e(f"s_cselect_b32 s{sCONS}, 0, s{sCONS}")

    def prologue(self):
        e, a = self.e, self.a
        e("s_cmp_ge_u32 s2, 256")
        e("s_cbranch_scc1 L_end")
        if a.stamp or a.dbg:
            e("s_memrealtime s[50:51]")
            e("s_memtime s[52:53]")
            e(f"s_load_dwordx2 s[48:49], s[0:1], {32 if a.dbg else 40}")
            e("s_mov_b32 s66, 0")
        e("s_load_dwordx8 s[4:11], s[0:1], 0")
        e("v_and_b32 v1, 63, v0                 ; lane")
        e("v_lshrrev_b32 v2, 6, v0              ; wave")
        e("v_lshrrev_b32 v3, 3, v1              ; lane/8")
        e(f"v_readfirstlane_b32 s{sW}, v2")
        e("v_and_b32 v4, 7, v1                  ; lane%8")
        e("v_and_b32 v5, 1, v2")
        if not a.m16: e("v_lshlrev_b32 v5, 1, v5              ; (w&1)<<1")
        e("v_mul_u32_u24 v6, 3072, v2           ; w*3072")
        e("v_lshl_add_u32 v6, v3, 7, v6         ; + (lane/8)*128")
        for i in range(3):
            e(f"v_add_u32 v7, {8*i}, v3")
            e("v_mul_u32_u24 v7, 11, v7")
            e("v_lshrrev_b32 v7, 5, v7")
            if a.m16:
                e("v_and_or_b32 v8, v7, 6, v5           ; f(row)")
            else:
                e("v_bfe_u32 v8, v7, 1, 1")
                e("v_lshlrev_b32 v8, 2, v8")
                e("v_bfe_u32 v9, v7, 2, 1")
                e("v_or3_b32 v8, v8, v9, v5             ; f(row)")
            e("v_xor_b32 v8, v8, v4")
            e(f"v_lshl_add_u32 v{VD+i}, v8, 4, v6")
        e("v_lshrrev_b32 v8, 5, v1              ; h")
        e("v_lshl_add_u32 v11, v2, 5, v4")
        e("v_mul_u32_u24 v11, 384, v11")
        if a.m16:
            e("v_and_b32 v12, 1, v3")
            e("v_lshl_add_u32 v11, v12, 6, v11")
            e("v_bfe_u32 v12, v1, 4, 1")
            e("v_lshl_add_u32 v11, v12, 5, v11")
            e(f"v_lshl_add_u32 v{VQO}, v8, 4, v11   ; (32w + lane%8)*384 + 64*l3 + 32*l4 + 16*l5")
        else:
            e("v_and_b32 v12, 3, v3")
            e("v_lshl_add_u32 v11, v12, 5, v11")
            e(f"v_lshl_add_u32 v{VQO}, v8, 4, v11   ; (32w + lane%8)*384 + 32*((lane>>3)&3) + 16h")
        e(f"s_mul_i32 s{sW3}, s{sW}, 3072")
        e(f"s_mov_b32 s{sPROD}, s{sW3}")
        e(f"s_add_u32 s{sPLIM}, s{sW3}, {NS*TILE}")
        if a.xor:
            e(f"s_xor_b32 s2, s2, {a.xor}")
        e(f"s_mul_i32 s{sCUR}, s2, {HEAD_BYTES * a.hmul}")
        self.hstep = a.hstep * HEAD_BYTES
        e("s_waitcnt lgkmcnt(0)")
        for srd, p, n in ((SQ, 4, TENSOR_BYTES), (SK, 6, TENSOR_BYTES), (SV, 8, TENSOR_BYTES), (SO, 10, 0)):
            if a.noload and srd != SO:
                n = 0
            e(f"s_mov_b32 s{srd}, s{p}")
            e(f"s_and_b32 s{srd+1}, s{p+1}, 0xffff")
            e(f"s_mov_b32 s{srd+2}, {n}")
            e(f"s_mov_b32 s{srd+3}, 0x20000")

    def setup2(self):
        e = self.e
        if self.a.m16:
            e("v_and_b32 v7, 15, v1                 ; c")
            e("v_bfe_u32 v9, v7, 3, 1")
            e("v_and_or_b32 v9, v7, 6, v9           ; f(c)")
            e("v_bfe_u32 v10, v1, 4, 1")
            e("v_lshl_or_b32 v10, v10, 1, v8        ; 2*l4 + l5")
            e("v_xor_b32 v9, v9, v10")
            e("v_mul_u32_u24 v10, 384, v7")
            e(f"v_lshl_add_u32 v{VA0}, v9, 4, v10")
            e("v_lshrrev_b32 v7, 2, v1")
            e("v_and_or_b32 v9, v7, 6, v8           ; f(row)")
            e("v_bfe_u32 v10, v1, 1, 1")
            e("v_xor_b32 v9, v9, v10")
            e("v_mul_u32_u24 v10, 384, v7")
            e("v_lshl_add_u32 v10, v9, 4, v10")
            e("v_and_b32 v11, 1, v1")
            e(f"v_lshl_add_u32 v{VB0}, v11, 3, v10")
        else:
            self.setup32()
        self.setup3()

    def setup32(self):
        e = self.e
        e("v_and_b32 v7, 31, v1                 ; m")
        e("v_bfe_u32 v9, v7, 1, 1")
        e("v_lshlrev_b32 v9, 2, v9")
        e("v_bfe_u32 v10, v7, 2, 2")
        e("v_or_b32 v9, v9, v10                 ; f(m)")
        e("v_xor_b32 v9, v9, v8                 ; f(m)^h")
        e("v_mul_u32_u24 v10, 384, v7           ; m*384")
        e(f"v_lshl_add_u32 v{VA0}, v9, 4, v10")
        e("v_bfe_u32 v9, v1, 2, 2               ; r")
        e("v_lshl_add_u32 v10, v8, 2, v9        ; 4h+r")
        e("v_mul_u32_u24 v10, 384, v10")
        e("v_bfe_u32 v11, v1, 1, 1              ; cc>>1")
        e("v_lshl_add_u32 v10, v11, 3, v10      ; base")
        e("v_bfe_u32 v11, v1, 3, 1              ; r>>1")
        e("v_lshlrev_b32 v11, 2, v11")
        e("v_bfe_u32 v12, v1, 4, 1              ; up")
        e("v_lshlrev_b32 v12, 1, v12")
        e("v_and_b32 v13, 1, v1")
        e("v_xor_b32 v13, v13, v8               ; (cc&1)^h")
        e("v_or3_b32 v11, v11, v12, v13         ; x")
        e(f"v_lshl_add_u32 v{VB0}, v11, 4, v10")

    def setup3(self):
        e = self.e
        if self.a.msum:
            for k in range(4): e(f"v_mov_b32 v{FB + 4 * DEPTH + k}, 0x3f803f80")
        e(f"s_mov_b32 s{sCONS}, 0")
        e(f"s_mov_b32 s{sREM}, {NH}")
        c = 192 ** -0.5 * math.log2(math.e)
        e(f"s_mov_b32 s{sC}, {f32hex(c)}")
        e(f"s_mov_b32 s{sNC}, {f32hex(-c)}")
        if self.a.m16 and self.a.pkfma:
            e(f"s_mov_b32 s{sC2}, {f32hex(c)}")
            e(f"s_mov_b32 s{sC2+1}, {f32hex(c)}")
        e(f"s_add_u32 s{sNXT}, s{sCUR}, {self.hstep}")
        e(f"s_add_u32 s{sNXT2}, s{sNXT}, 6144")
        e(f"s_mov_b32 s{sPRV}, s{sCUR}")
        e(f"s_mov_b32 s{sPRV2}, s{sCUR}")
        e("s_mov_b32 vcc_lo, 0x00ff00ff")
        e("s_mov_b32 vcc_hi, 0x00ff00ff")

    def addr_calc(self, kind):
        base = VA0 if kind == "K" else VB0
        o = [f"v_add_u32 v{VC}, s{sCONS}, v{base}"]
        o += [f"v_xor_b32 v{VC+u}, {u<<5}, v{VC}" for u in range(1, 4)]
        o += [f"s_add_u32 s{sCONS}, s{sCONS}, {TILE}",
              f"s_cmp_eq_u32 s{sCONS}, {NS*TILE}",
              f"s_cselect_b32 s{sCONS}, 0, s{sCONS}"]
        return o
    def kord(self, jj):
        return (jj % 12, jj // 12) if self.a.kchain else (jj // 2, jj % 2)
    def vord(self, jj):
        if self.a.vchain == 4: return (jj % 4, jj // 4)
        if self.a.vchain == 2: return (2 * (jj // 12) + jj % 2, (jj % 12) // 2)
        return (jj // 6, jj % 6)
    def kord16(self, jj):
        return (jj // 6, jj % 6) if self.a.kchain else (jj % 4, jj // 4)
    def vord16(self, jj):
        return (jj % 2, jj // 2) if self.a.vchain else (jj // 12, jj % 12)
    def item_mfma16(self, kind, j):
        b = FB + 4 * (j % DEPTH)
        tl, jj = j // 24, j % 24
        o = []
        for u in range(2):
            if kind == "K":
                kt, s = self.kord16(jj)
                kt += 4 * tl
                D = S0 + 16 * (kt >> 1) + 8 * u + 4 * (kt & 1)
                first = s == 0
                B = qfrag16(s, u)
            else:
                T, dt = self.vord16(jj)
                D = otile(2 * (dt // 4)) + 16 * u + 4 * (dt % 4)
                first = tl == 0 and T == 0
                B = 8 * (2 * tl + T) + 4 * u
            C = "0" if first else f"v[{D}:{D+3}]"
            o.append(f"v_mfma_f32_16x16x32_bf16 v[{D}:{D+3}], v[{b}:{b+3}], v[{B}:{B+3}], {C}")
        if kind == "V" and self.a.msum and dt in (3, 8):
            u = int(dt == 8)
            D, B, one = SUMD + 4 * u, 8 * (2 * tl + T) + 4 * u, FB + 4 * DEPTH
            C = "0" if first else f"v[{D}:{D+3}]"
            o.append(f"v_mfma_f32_16x16x32_bf16 v[{D}:{D+3}], v[{one}:{one+3}], v[{B}:{B+3}], {C}")
        return o
    def item_reads(self, kind, j):
        r = self.item_reads0(kind, j)
        if self.a.dupread and j % self.a.dupread == 0:
            r = [x.replace(f"v[{FB + 4 * (j % DEPTH)}:", f"v[{TR0 - 2}:").replace(f":{FB + 4 * (j % DEPTH) + 3}]", f":{TR0 + 1}]") for x in r[:0]] + r
        return r
    def item_reads0(self, kind, j):
        b = FB + 4 * (j % DEPTH)
        jj = j % 24
        if self.a.m16:
            if kind == "K":
                kt, s = self.kord16(jj)
                return [f"ds_read_b128 v[{b}:{b+3}], v{VC+2*(s&1)} offset:{kt*6144+128*(s>>1)}"]
            T, dt = self.vord16(jj)
            off = T * 12288 + 128 * (dt // 4)
            return [f"ds_read_b64_tr_b16 v[{b}:{b+1}], v{VC+dt%4} offset:{off}",
                    f"ds_read_b64_tr_b16 v[{b+2}:{b+3}], v{VC+dt%4} offset:{off+6144}"]
        if kind == "K":
            s, st = self.kord(jj)
            return [f"ds_read_b128 v[{b}:{b+3}], v{VC+s%4} offset:{st*12288+128*(s//4)}"]
        ks, t = self.vord(jj)
        off = ks * 6144 + (t // 2) * 128
        return [f"ds_read_b64_tr_b16 v[{b}:{b+1}], v{VC+2*(t%2)} offset:{off}",
                f"ds_read_b64_tr_b16 v[{b+2}:{b+3}], v{VC+2*(t%2)+1} offset:{off+3072}"]
    def item_mfma(self, kind, j):
        b = FB + 4 * (j % DEPTH)
        tl, jj = j // 24, j % 24
        if kind == "K":
            s, st = self.kord(jj)
            D = S0 + 16 * (2 * tl + st)
            C = "0" if s == 0 else f"v[{D}:{D+15}]"
            q = qfrag(s)
            return f"v_mfma_f32_32x32x16_bf16 v[{D}:{D+15}], v[{b}:{b+3}], v[{q}:{q+3}], {C}"
        ks, t = self.vord(jj)
        D = otile(t)
        P = 8 * (2 * tl + ks // 2) + 4 * (ks % 2)
        C = "0" if (tl == 0 and ks == 0) else f"v[{D}:{D+15}]"
        return f"v_mfma_f32_32x32x16_bf16 v[{D}:{D+15}], v[{b}:{b+3}], v[{P}:{P+3}], {C}"

    def plain(self, x):
        if isinstance(x, tuple):
            if x[0] == "WAIT": self.wait_for(x[1])
            elif x[0] == "LABEL": self.lab(x[1])
            else: self.vm(*x)
        elif self.a.nocompute and x.startswith(("v_", "ds_")):
            pass
        elif self.a.nomfma and x.startswith("v_mfma"):
            self.e("s_nop 15"); self.e("s_nop 15")
        elif self.a.nosm and x.startswith(("v_exp", "v_fma", "v_add_f32", "v_max3")):
            pass
        elif self.a.nolds and x.startswith("ds_read") and not self.p.inpro:
            pass
        else:
            self.e(x)

    def preread(self, kind):
        for x in self.addr_calc(kind): self.plain(x)
        for j in range(DEPTH):
            for r in self.item_reads(kind, j): self.plain(r)

    def mblock(self, kind, sides, barrier):
        rpf = 1 if kind == "K" else 2
        pend = list(range(DEPTH))
        def req(j):
            for r in self.item_reads(kind, j): self.plain(r)
            pend.append(j)
        for j in range(96):
            tl, jj = j // 24, j % 24
            if j in pend:
                k = pend.index(j)
                if not self.a.nocompute:
                    self.e(f"s_waitcnt lgkmcnt({(len(pend) - k - 1) * rpf})")
                del pend[:k + 1]
            sd = sides.get(j, [])
            if self.a.m16:
                m = self.item_mfma16(kind, j)
                self.plain(m[0])
                h = len(sd) // 2
                if any(isinstance(x, str) and "s_cbranch" in x for x in sd): h = 0
                for x in sd[:h]: self.plain(x)
                sd = sd[h:]
                for x in m[1:]: self.plain(x)
            else:
                self.plain(self.item_mfma(kind, j))
            if jj + DEPTH < 24:
                req(j + DEPTH)
            elif jj == 24 - DEPTH and tl < 3:
                for x in self.addr_calc(kind): self.plain(x)
            if jj == BARPOS:
                barrier(tl)
                pend.clear()
                if tl < 3:
                    for k in range(BARPOS + DEPTH - 23): req(24 * (tl + 1) + k)
            elif jj > BARPOS and tl < 3:
                req(j + DEPTH)
            for x in sd:
                self.plain(x)

    def max_list(self, tiles, first):
        o = []
        vals = [16 * t + i for t in tiles for i in range(16)]
        if self.a.m16:
            v0 = [r for r in vals if not r & 8]; v1 = [r for r in vals if r & 8]
            vals = [x for i in range(0, len(v0), 2) for x in (v0[i], v0[i+1], v1[i], v1[i+1])]
        k = 0
        if first:
            o.append(f"v_max_f32 v{MX}, v{vals[0]}, v{vals[1]}")
            o.append(f"v_max_f32 v{MX+1}, v{vals[2]}, v{vals[3]}")
            k = 4
        ch = 0
        while k < len(vals):
            o.append(f"v_max3_f32 v{MX+ch}, v{MX+ch}, v{vals[k]}, v{vals[k+1]}")
            ch ^= 1
            k += 2
        return o

    def softmax16(self, maxdone):
        a = self.a
        o = []
        e = o.append
        M, NEG = MX, MX + 2
        SUM = [MX, MX + 4]
        o += self.max_list(list(range(maxdone, 8)), maxdone == 0)
        def allred(op, x, y, fin):
            e("s_nop 1")
            e(f"v_permlane32_swap_b32 v{x}, v{y}")
            e(f"{op} v{x}, v{x}, v{y}")
            e(f"v_mov_b32 v{y}, v{x}")
            e("s_nop 1")
            e(f"v_permlane16_swap_b32 v{x}, v{y}")
            e(f"{op} v{x}, v{x}, v{y}")
            d = fin(x)
            e(f"v_mov_b32 v{d+1}, v{d}")
            e("s_nop 1")
            e(f"v_permlane32_swap_b32 v{d}, v{d+1}")
        def negf(x):
            e(f"v_mul_f32 v{NEG}, s{sNC}, v{x}"); return NEG
        allred("v_max_f32", M, M + 1, negf)
        U = lambda i: (i >> 2) & 1
        def fma(i):
            u = U(i)
            if a.pkfma:
                e(f"v_pk_fma_f32 v[{2*i}:{2*i+1}], v[{2*i}:{2*i+1}], s[{sC2}:{sC2+1}], v[{NEG}:{NEG+1}] op_sel:[0,0,{u}] op_sel_hi:[1,1,{u}]")
            else:
                e(f"v_fma_f32 v{2*i}, v{2*i}, s{sC}, v{NEG+u}")
                e(f"v_fma_f32 v{2*i+1}, v{2*i+1}, s{sC}, v{NEG+u}")
        def ex(i):
            e(f"v_exp_f32 v{2*i}, v{2*i}")
            e(f"v_exp_f32 v{2*i+1}, v{2*i+1}")
        def fin(i):
            S = SUM[U(i)]
            if a.msum:
                pass
            elif i in (0, 4):
                e(f"v_mov_b32 v{S}, v{2*i}")
                e(f"v_mov_b32 v{S+1}, v{2*i+1}")
            elif a.pkadd:
                e(f"v_pk_add_f32 v[{S}:{S+1}], v[{S}:{S+1}], v[{2*i}:{2*i+1}]")
            else:
                e(f"v_add_f32 v{S}, v{S}, v{2*i}")
                e(f"v_add_f32 v{S+1}, v{S+1}, v{2*i+1}")
            e(f"v_cvt_pk_bf16_f32 v{i}, v{2*i}, v{2*i+1}")
        fma(0); fma(1); ex(0)
        for i in range(64):
            if i + 2 < 64: fma(i + 2)
            if i + 1 < 64: ex(i + 1)
            else: e("s_nop 0")
            fin(i)
        if a.msum:
            e("s_nop 1")
            return o
        e(f"v_add_f32 v{SUM[0]}, v{SUM[0]}, v{SUM[0]+1}")
        e(f"v_add_f32 v{SUM[0]+1}, v{SUM[1]}, v{SUM[1]+1}")
        def invf(x):
            e(f"v_rcp_f32 v{INV}, v{x}"); e("s_nop 0"); return INV
        allred("v_add_f32", SUM[0], SUM[0] + 1, invf)
        return o

    def softmax_list(self, maxdone):
        a = self.a
        if a.m16: return self.softmax16(maxdone)
        o = []
        e = o.append
        M, NEG, SUM = MX, MX + 2, MX + 4
        o += self.max_list(list(range(maxdone, 8)), maxdone == 0)
        e(f"v_max_f32 v{M}, v{M}, v{M+1}")
        e(f"v_mov_b32 v{M+1}, v{M}")
        e("s_nop 1")
        e(f"v_permlane32_swap_b32 v{M}, v{M+1}")
        e(f"v_max_f32 v{M}, v{M}, v{M+1}")
        e(f"v_mul_f32 v{NEG}, s{sNC}, v{M}")
        if a.pkfma:
            e(f"v_mov_b32 v{NEG+1}, s{sC}")
        def fma(i):
            if a.pkfma:
                e(f"v_pk_fma_f32 v[{2*i}:{2*i+1}], v[{2*i}:{2*i+1}], v[{NEG}:{NEG+1}], v[{NEG}:{NEG+1}] op_sel:[0,1,0] op_sel_hi:[1,1,0]")
            else:
                e(f"v_fma_f32 v{2*i}, v{2*i}, s{sC}, v{NEG}")
                e(f"v_fma_f32 v{2*i+1}, v{2*i+1}, s{sC}, v{NEG}")
        def ex(i):
            e(f"v_exp_f32 v{2*i}, v{2*i}")
            e(f"v_exp_f32 v{2*i+1}, v{2*i+1}")
        def fin(i):
            if i == 0:
                e(f"v_mov_b32 v{SUM}, v0")
                e(f"v_mov_b32 v{SUM+1}, v1")
            elif a.pkadd:
                e(f"v_pk_add_f32 v[{SUM}:{SUM+1}], v[{SUM}:{SUM+1}], v[{2*i}:{2*i+1}]")
            else:
                e(f"v_add_f32 v{SUM}, v{SUM}, v{2*i}")
                e(f"v_add_f32 v{SUM+1}, v{SUM+1}, v{2*i+1}")
            e(f"v_cvt_pk_bf16_f32 v{i}, v{2*i}, v{2*i+1}")
        fma(0); fma(1); ex(0)
        for i in range(64):
            if i + 2 < 64: fma(i + 2)
            if i + 1 < 64: ex(i + 1)
            else: e("s_nop 0")
            fin(i)
        e(f"v_add_f32 v{SUM}, v{SUM}, v{SUM+1}")
        e(f"v_mov_b32 v{SUM+1}, v{SUM}")
        e("s_nop 1")
        e(f"v_permlane32_swap_b32 v{SUM}, v{SUM+1}")
        e(f"v_add_f32 v{SUM}, v{SUM}, v{SUM+1}")
        e(f"v_rcp_f32 v{INV}, v{SUM}")
        return o

    def ochunk_list(self, cc):
        o = []
        b = otile(2 * cc)
        for i in range(4):
            if self.a.pkmul:
                for k in range(4):
                    r = b + 8 * i + 2 * k
                    u = (i >> 1) if self.a.m16 else 0
                    o.append(f"v_pk_mul_f32 v[{r}:{r+1}], v[{r}:{r+1}], v[{INV}:{INV+1}] op_sel:[0,{u}] op_sel_hi:[1,{u}]")
            else:
                for k in range(8):
                    o.append(f"v_mul_f32 v{b+8*i+k}, v{b+8*i+k}, v{SUMD + 4 * (i >> 1) if self.a.msum else INV + ((i >> 1) if self.a.m16 else 0)}")
            for k in range(4):
                o.append(f"v_cvt_pk_bf16_f32 v{b+4*i+k}, v{b+8*i+2*k}, v{b+8*i+2*k+1}")
        o += self.transp([b, b + 4, b + 8, b + 12], b + 16)
        return o
    def qt_list(self, cc):
        return self.transp([qslot(x) for x in QLD[cc]], qslot(QTMP[cc]), True)

    def vblock(self, lst, nparts, groups, barrier, nxt, tail):
        n = len(lst)
        cs = [0]
        for s in lst: cs.append(cs[-1] + (cost(s) if isinstance(s, str) else 0))
        lastpos = max(n - tail, 0)
        tot = cs[lastpos]
        cuts = []
        for p in range(1, nparts):
            cuts.append(min(i for i in range(n + 1) if cs[i] >= tot * p / nparts))
        cuts.append(lastpos)
        lo = 0
        ins = {}
        for p, hi in enumerate(cuts):
            g = groups[p]
            for k, grp in enumerate(g):
                ins.setdefault(lo + int(k * (hi - lo) * self.a.front) // len(g), []).extend(grp)
            lo = hi
        for i in range(n + 1):
            if i in cuts:
                for p, cpos in enumerate(cuts):
                    if cpos == i:
                        barrier(p)
                        if p == nparts - 1 and nxt: self.preread(nxt)
            for x in ins.get(i, []): self.plain(x)
            if i < n: self.plain(lst[i])

    def group(self, name, lag):
        e, a = self.e, self.a
        phases = self.phases
        n = len(phases)
        p = self.p
        def dma_groups(g, pro):
            out = []
            for (t, ha) in self.issue[name].get(g % n, []):
                if pro:
                    out.append(self.dma_list(t, 0, 0)); assert ha == 0
                else:
                    rel = ha + (1 if g >= n else 0)
                    assert rel in (0, 1), (name, g, t, ha)
                    d = self.dma_list(t, rel, rel)
                    if g > min(n, a.skipbar):
                        assert rel == 1
                        self.nlab += 1
                        d = [d[0], f"s_cbranch_scc1 L_nd{self.nlab}"] + d[2:] + [("LABEL", f"L_nd{self.nlab}")]
                    out.append(d)
            return out
        def end_interval(g, pro):
            self.trace(TR0)
            for (t, ha) in self.cert.get(g % n, []):
                self.wait_for(("T", t, ha if pro else ha + (1 if g >= n else 0)))
            if a.pace >= 0 and a.pacelo <= g <= a.pacehi:
                if pro:
                    e(f"s_waitcnt vmcnt({a.pace})")
                else:
                    self.nlab += 1
                    e(f"s_cmp_lg_u32 s{sREM}, {NH}")
                    e(f"s_cbranch_scc1 L_np{self.nlab}")
                    e(f"s_waitcnt vmcnt({a.pace})")
                    self.lab(f"L_np{self.nlab}")
            e("s_waitcnt lgkmcnt(0)")
            if not pro and g >= min(n, a.skipbar):
                self.nlab += 1
                e(f"s_cmp_eq_u32 s{sREM}, 1")
                e(f"s_cbranch_scc1 L_nb{self.nlab}")
                e("s_barrier")
                self.lab(f"L_nb{self.nlab}")
            else:
                e("s_barrier")
            self.trace(TR1, True)
        pt = self.pro_tiles[name]
        qa = a.qatA if name == "A" else a.qatB
        order = pt[:qa] + ["Q"] + pt[qa:]
        es = [x.split(",") if x else [] for x in a.es.split(";")] if a.es else None
        if es:
            order = [0, "Q"] if name == "A" else [0]
        for step in order:
            if step == "Q":
                e(f"s_add_u32 s{sT}, s{sCUR}, 6144")
                for k in range(12):
                    self.vm(*self.qload(k, sCUR, sT, 0))
            else:
                for x in self.dma_list(step, 0, 0): self.emit(x)
        if es and name == "A":
            e(f"s_add_u32 s{sPROD}, s{sPROD}, {TILE * (len(pt) - 1)}")
        self.setup2()
        if es and name == "B":
            e(f"s_add_u32 s{sPRV2}, s{sCUR}, 6144")
        self.wait_for(("T", 0, 0))
        e("s_barrier")
        qn, tdone = 0, []
        pf = [int(x) for x in a.pf.split(",")] if (a.pf and lag) else []
        if pf:
            e("v_lshlrev_b32 v14, 4, v1")
        done = 0
        for g in range(lag):
            for tok in (es[g] if es else []):
                if tok[0] == "K":
                    t = int(tok[1])
                    if t in self.pro_tiles["A"]:
                        e(f"s_sub_u32 m0, s{sPROD}, 12288")
                        e(f"s_add_u32 s{sT}, s{sCUR}, {t * TILE - 12288}")
                        for i in range(3):
                            of = f" offset:{1024*i}" if i else ""
                            self.vm(f"buffer_load_dwordx4 v{VD+i}, s[{SK}:{SK+3}], s{sT} offen{of}{self.ld} lds", ("T", t, 0))
                    for x in self.dma_list(t, 0, 0): self.emit(x)
                elif tok[0] == "Q":
                    for k in range(int(tok[1:])):
                        self.vm(*self.qload(qn, sCUR, sPRV2, 0)); qn += 1
            for grp, (t, _) in zip(dma_groups(g, True), self.issue[name].get(g % n, [])):
                if es and t <= 3: continue
                for x in grp: self.emit(x)
            for tok in (es[g] if es else []):
                if tok[0] == "T":
                    cc = int(tok[1]); tdone.append(cc)
                    self.wait_for(("Q", cc, 0))
                    for x in self.qt_list(cc): self.plain(x)
            if pf and pf[g]:
                srd = {"Q": SQ, "K": SK, "V": SV}[a.pfsrc]
                e(f"s_sub_u32 s{sT}, s{sW}, 4")
                e(f"s_mul_i32 s{sT}, s{sT}, {1024 * pf[g]}")
                e(f"s_add_u32 s{sT}, s{sT}, s{sNXT}")
                if done: e(f"s_add_u32 s{sT}, s{sT}, {done}")
                fl = "".join(" " + x for x in a.pfld.split(",") if x)
                for k in range(pf[g]):
                    if k == 4: e(f"s_add_u32 s{sT}, s{sT}, 4096")
                    of = f" offset:{1024 * (k % 4)}" if k % 4 else ""
                    self.vm(f"buffer_load_dwordx4 v[{XR}:{XR+3}], v14, s[{srd}:{srd+3}], s{sT} offen{of}{fl}", ("P", g, 0))
                done += 4 * 1024 * pf[g]
                assert done <= HEAD_BYTES and pf[g] <= 8
            end_interval(g, True)
        assert not (es and lag) or qn == 12
        self.preread("K")
        for cc in range(3):
            if cc in tdone: continue
            self.wait_for(("Q", cc, 0))
            for s in self.qt_list(cc): self.plain(s)
        p.inpro = False
        self.o.append(".p2align 6")
        self.lab(f"L_head{name}{self.sfx}")
        self.htrace()
        place = dict(x.split(":") for x in (a.placeA if name == "A" else a.placeB).split(","))
        qdist = dict(zip(phases, [int(x) for x in (a.qdistA if name == "A" else a.qdistB).split(",")]))
        assert sum(qdist.values()) == 12
        qk = [4 * cc + j for j in range(4) for cc in range(3)] if a.qord == "j" else list(range(12))
        ql = [self.qload(k, sNXT, sNXT2, 1) for k in qk]
        qpre = [f"s_cmp_eq_u32 s{sREM}, 1", f"s_cselect_b32 s{SQ+2}, 0, s{SQ+2}"]
        units = {}
        for cc in range(3):
            units[f"O{cc}"] = self.ochunk_list(cc)
            units[f"T{cc}"] = [("WAIT", ("Q", cc, 1))] + self.qt_list(cc)
        wdist = dict(zip(phases, [int(x) for x in (a.wdistA if name == "A" else a.wdistB).split(",")]))
        assert sum(wdist.values()) == 12
        idx = {ph: i for i, ph in enumerate(phases)}
        e0 = idx["E0"]
        cyc = lambda ph: (idx[ph] - e0) % n
        wl = [(cc, j) for cc in range(3) for j in range(4)]
        if a.word == "j": wl = [(cc, j) for j in range(4) for cc in range(3)]
        wat = {}
        for ph in sorted(phases, key=cyc):
            wat[ph] = [wl.pop(0) for _ in range(wdist[ph])]
            for (cc, j) in wat[ph]:
                assert cyc(ph) > cyc(place[f"O{cc}"]), ("store before its chunk", ph, cc)
                lastok = ("K1", "K2", [x for x in phases if x[0] == "S"][-1])[cc]
                assert cyc(ph) <= cyc(lastok), ("store too late", ph, cc)
        mem, val = {}, {}
        for pi, ph in enumerate(phases):
            g = dma_groups(pi + lag, False)
            for k in range(qdist[ph]):
                g.append((qpre if len(ql) == 12 else []) + [ql.pop(0)])
            g += [[self.ostore(cc, j, -1 if ph[0] != "E" else 0)] for (cc, j) in wat[ph]]
            mem[ph] = g
            v = []
            for u in ("O0", "O1", "O2", "T0", "T1", "T2"):
                if place[u] == ph: v += units[u]
            val[ph] = v
        def msides(kind):
            sides = {}
            for tl in range(4):
                ph = f"{kind}{tl}"
                lo, hi = (24 * tl - 2 if tl else 0), 24 * tl + BARPOS - 1
                v = list(val[ph])
                if kind == "K" and a.maxk and tl >= 1:
                    v = v + self.max_list([2 * tl - 2, 2 * tl - 1], tl == 1)
                vlo = 24 * tl + 5 if (kind == "K" and a.maxk and tl >= 1 and not val[ph]) else lo
                for k, s in enumerate(v):
                    sides.setdefault(vlo + (k * (hi - vlo + 1)) // len(v), []).append(s)
                g = mem[ph]
                for k, grp in enumerate(g):
                    sides.setdefault(lo + int(k * (hi - lo + 1) * a.front) // len(g), []).extend(grp)
            return sides
        nsm = sum(1 for x in phases if x[0] == "S")
        nem = sum(1 for x in phases if x[0] == "E")
        self.c(f"---- {name}: K block")
        if a.prio: e(f"s_setprio {a.prio}")
        self.mblock("K", msides("K"), lambda t: end_interval(idx[f"K{t}"] + lag, False))
        self.c(f"---- {name}: softmax")
        if a.prio: e("s_setprio 0")
        e("s_nop 7")
        e("s_nop 2")
        self.vblock(self.softmax_list(6 if a.maxk else 0), nsm, [mem[f"S{i}"] for i in range(nsm)],
                    lambda i: end_interval(idx[f"S{i}"] + lag, False), "V", a.tail)
        self.c(f"---- {name}: V block")
        self.htrace()
        if a.prio: e(f"s_setprio {a.prio}")
        self.mblock("V", msides("V"), lambda t: end_interval(idx[f"V{t}"] + lag, False))
        self.c(f"---- {name}: E")
        if a.prio: e("s_setprio 0")
        e(f"s_mov_b32 s{sPRV}, s{sCUR}")
        e(f"s_add_u32 s{sPRV2}, s{sCUR}, 6144")
        e(f"s_mov_b32 s{SO+2}, {0 if a.nostore else TENSOR_BYTES}")
        e("s_nop 3")
        if a.msum:
            e("s_nop 3")
            for u in range(2): self.plain(f"v_rcp_f32 v{SUMD+4*u}, v{SUMD+4*u}")
        if a.laste:
            assert a.skipbar <= idx["E0"] + lag
            e(f"s_cmp_eq_u32 s{sREM}, 1")
            e(f"s_cbranch_scc1 L_last{name}{self.sfx}")
        for i in range(nem):
            last = i == nem - 1
            self.vblock(val[f"E{i}"], 1, [mem[f"E{i}"]], lambda _: end_interval(idx[f"E{i}"] + lag, False),
                        "K" if last else None, a.tail if last else 0)
        e(f"s_mov_b32 s{sCUR}, s{sNXT}")
        e(f"s_add_u32 s{sNXT}, s{sNXT}, {self.hstep}")
        e(f"s_add_u32 s{sNXT2}, s{sNXT}, 6144")
        e(f"s_sub_u32 s{sREM}, s{sREM}, 1")
        if a.laste:
            e(f"s_branch L_head{name}{self.sfx}")
            self.lab(f"L_last{name}{self.sfx}")
            self.c("---- last head: every chunk leaves as soon as it is ready")
            for cc in range(3):
                u = units[f"O{cc}"]
                st = [self.ostore(cc - 1, j, 0)[0] for j in range(4)] if cc else []
                for k, x in enumerate(u):
                    self.plain(x)
                    if st and k % 4 == 1: e(st.pop(0))
            e("s_nop 1")
            for j in range(4): e(self.ostore(2, j, 0)[0])
            return
        e(f"s_cmp_lg_u32 s{sREM}, 0")
        e(f"s_cbranch_scc1 L_head{name}{self.sfx}")
        self.c("---- last head: what the next head's K block would have done")
        done = [x for ph in phases if ph[0] == "E" for x in wat[ph]]
        for cc in range(3):
            if place[f"O{cc}"][0] != "E":
                for x in units[f"O{cc}"]: self.plain(x)
            for j in range(4):
                if (cc, j) not in done: e(self.ostore(cc, j, 0)[0])

    def check_schedule(self, name):
        n, lag = len(self.phases), self.a.lag
        rd = {int(ph[1]) + (4 if ph[0] == "V" else 0): i for i, ph in enumerate(self.phases) if ph[0] in "KV"}
        iss, cer = {}, {}
        for h in range(-1, 4):
            for g in range(n):
                for (t, ha) in self.issue[name].get(g, []): iss[8 * (h + ha) + t] = n * h + g
                for (t, ha) in self.cert.get(g, []): cer[8 * (h + ha) + t] = n * h + g
        order = sorted(iss, key=lambda x: (iss[x], x))
        assert order == sorted(order), "issue order must be stream order"
        for x in range(8, 24):
            h, t = divmod(x, 8)
            ra = n * h + rd[t]
            assert cer[x] < ra, ("cert", x)
            assert iss[x] <= cer[x], ("iss/cert", x)
            ho, to = divmod(x - NS, 8)
            assert iss[x] > n * ho + rd[to] + lag, ("slot", x, iss[x], n * ho + rd[to] + lag)
        self.pro_tiles[name] = [t for t in range(8) if iss[t] < 0]
        assert self.pro_tiles[name] == list(range(len(self.pro_tiles[name])))
        for t in range(1, 8):
            assert cer[t] >= 0, ("first-head cert", t)

    def schedule(self):
        a = self.a
        self.phases = a.phases.split(",")
        n = len(self.phases)
        rd = {int(ph[1]) + (4 if ph[0] == "V" else 0): i for i, ph in enumerate(self.phases) if ph[0] in "KV"}
        self.issue, self.cert, self.pro_tiles = {"A": {}, "B": {}}, {}, {}
        for name, dd in (("A", a.dist), ("B", a.distB or a.dist)):
            dist = [int(x) for x in dd.split(",")]
            for t in range(8):
                g = rd[t] - dist[t]
                self.issue[name].setdefault(g % n, []).append((t, 1 if g < 0 else 0))
            for g in self.issue[name]: self.issue[name][g].sort(key=lambda x: (x[1], x[0]))
        for t in range(8):
            g = rd[t] - 1
            self.cert.setdefault(g % n, []).append((t, 1 if g < 0 else 0))
        for name in "AB": self.check_schedule(name)

    def build(self, odd=None):
        e, a = self.e, self.a
        lds = NS * TILE
        self.o.append(HEADER + f"; @launch grid=(256,1,1) block=(512,1,1) lds={lds}")
        self.o.append('.amdgcn_target "amdgcn-amd-amdhsa--gfx950"')
        self.o.append(".text")
        self.o.append(f".globl {NAME}_kernel")
        self.o.append(".p2align 8")
        self.o.append(f".type {NAME}_kernel,@function")
        self.lab(f"{NAME}_kernel")
        self.p = Path()
        self.prologue()
        common = list(self.p.pro)
        paths = []
        variants = [("", a)] + ([("o", odd)] if odd else [])
        if odd:
            e(f"s_getreg_b32 s{sT}, hwreg(HW_REG_XCC_ID)")
            e(f"s_bitcmp1_b32 s{sT}, 0")
            e("s_cbranch_scc1 L_varo")
        for sfx, va in variants:
            self.a = va
            self.schedule()
            if sfx: self.lab("L_var" + sfx)
            e(f"s_cmp_ge_u32 s{sW}, 4")
            e(f"s_cbranch_scc1 L_grpB{sfx}")
            for name, lag in (("A", 0), ("B", va.lag)):
                if name == "B": self.lab("L_grpB" + sfx)
                self.p = Path(); self.p.pro = list(common)
                self.sfx = sfx
                self.group(name, lag)
                paths.append(self.p)
                if not (name == "B" and va is variants[-1][1]): e("s_branch L_fin")
        self.a = a
        self.lab("L_fin")
        if a.dbg:
            e("s_waitcnt vmcnt(0)")
            self.htrace()
            e(f"s_cmp_lg_u32 s{sW}, {a.dbg - 1}")
            e("s_cbranch_scc1 L_end")
            e("s_mov_b32 s60, s48")
            e("s_and_b32 s61, s49, 0xffff")
            e("s_mov_b32 s62, 256")
            e("s_mov_b32 s63, 0x20000")
            e("v_mbcnt_lo_u32_b32 v8, -1, 0")
            e("v_lshlrev_b32 v8, 2, v8")
            e(f"v_subrev_u32 v0, s50, v{TR0}")
            e("s_sub_u32 s68, s68, s52")
            e("s_lshr_b32 s68, s68, 4")
            e("v_writelane_b32 v0, s68, 9")
            e("s_not_b32 s50, s50")
            e("v_mov_b32 v1, s64")
            e("v_writelane_b32 v1, s50, 0")
            e("s_mov_b64 exec, 0x3ff")
            e("buffer_atomic_add v0, v8, s[60:63], 0 offen offset:8")
            e("s_mov_b64 exec, 3")
            e("buffer_atomic_umax v1, v8, s[60:63], 0 offen")
        if a.stamp:
            e("s_waitcnt vmcnt(0)")
            e("s_memrealtime s[54:55]")
            e("s_memtime s[56:57]")
            e("s_getreg_b32 s58, hwreg(HW_REG_XCC_ID)")
            e("s_getreg_b32 s67, hwreg(HW_REG_HW_ID)")
            e("s_waitcnt lgkmcnt(0)")
            e(f"s_lshl_b32 s59, s2, 3")
            e(f"s_add_u32 s59, s59, s{sW}")
            e(f"s_lshl_b32 s59, s59, 5")
            e("s_mov_b32 s60, s48")
            e("s_and_b32 s61, s49, 0xffff")
            e("s_mov_b32 s62, 65536")
            e("s_mov_b32 s63, 0x20000")
            for k, r in enumerate((50, 51, 54, 55, 52, 56, 58, 67)):
                e(f"v_mov_b32 v{k}, s{r}")
            e("v_mov_b32 v8, 0")
            e("s_mov_b64 exec, 1")
            e("buffer_store_dwordx4 v[0:3], v8, s[60:63], s59 offen")
            e("buffer_store_dwordx4 v[4:7], v8, s[60:63], s59 offen offset:16")
            if a.trace or a.htrace or a.rtrace:
                e("s_mov_b64 exec, -1")
                e("s_mov_b32 s62, 0x1000000")
                e("v_mbcnt_lo_u32_b32 v8, -1, 0")
                e("v_mbcnt_hi_u32_b32 v8, -1, v8")
                e("v_lshlrev_b32 v8, 2, v8")
                e("s_lshl_b32 s59, s59, 4")
                e("s_add_u32 s59, s59, 65536")
                e(f"buffer_store_dword v{TR0}, v8, s[60:63], s59 offen")
                e(f"buffer_store_dword v{TR1}, v8, s[60:63], s59 offen offset:256")
        e("s_waitcnt vmcnt(0)")
        self.lab("L_end")
        e("s_endpgm")
        for p in paths: self.resolve_waits(p)
        self.o.append(f""".section .rodata,"a"
.p2align 6
.amdhsa_kernel {NAME}_kernel
  .amdhsa_next_free_vgpr {NV}
  .amdhsa_next_free_sgpr 72
  .amdhsa_accum_offset {NV}
  .amdhsa_group_segment_fixed_size 0
  .amdhsa_kernarg_size 48
  .amdhsa_user_sgpr_count 2
  .amdhsa_user_sgpr_kernarg_segment_ptr 1
  .amdhsa_system_sgpr_workgroup_id_x 1
.end_amdhsa_kernel
""")
        return "\n".join(self.o)

    def resolve_waits(self, p):
        for (idx, tag, inpro, pos) in p.waits:
            c = []
            if inpro:
                seq = p.pro[:pos]
                last = max(i for i, t in enumerate(seq) if t == tag)
                c.append(len(seq) - 1 - last)
            else:
                for it in range(NH):
                    seq = list(p.pro)
                    for j in range(it + 1):
                        b = p.body if j < it else p.body[:pos]
                        seq += [(k, x, h + j) for (k, x, h) in b]
                    want = (tag[0], tag[1], tag[2] + it)
                    if it == 0 and want not in seq: continue
                    last = max(i for i, t in enumerate(seq) if t == want)
                    c.append(len(seq) - 1 - last)
            nn = min(c)
            assert nn <= 63
            self.o[idx] = f"    s_waitcnt vmcnt({nn})"

if __name__ == "__main__":
    ap = argparse.ArgumentParser()
    ap.add_argument("-o", default=f"cdna_kernels/{NAME}.s")
    ap.add_argument("--ld", default="nt")
    ap.add_argument("--ldq", default=None)
    ap.add_argument("--st", default="")
    ap.add_argument("--win", type=int, default=0)
    ap.add_argument("--skipbar", type=int, default=99)
    ap.add_argument("--depth", type=int, default=6)
    ap.add_argument("--qord", default="c")
    ap.add_argument("--word", default="c")
    ap.add_argument("--dbg", type=int, default=0)
    ap.add_argument("--pace", type=int, default=-1)
    ap.add_argument("--pacelo", type=int, default=0)
    ap.add_argument("--pacehi", type=int, default=15)
    ap.add_argument("--front", type=float, default=1.0)
    ap.add_argument("--es", default="")
    ap.add_argument("--qatA", type=int, default=1)
    ap.add_argument("--qatB", type=int, default=9)
    ap.add_argument("--pf", default="")
    ap.add_argument("--pfsrc", default="Q")
    ap.add_argument("--pfld", default="")
    ap.add_argument("--vchain", type=int, default=0)
    ap.add_argument("--dupread", type=int, default=0)
    ap.add_argument("--xor", type=int, default=0)
    ap.add_argument("--hmul", type=int, default=1)
    ap.add_argument("--hstep", type=int, default=256)
    ap.add_argument("--lag", type=int, default=4)
    ap.add_argument("--prio", type=int, default=0)
    ap.add_argument("--tail", type=int, default=24)
    ap.add_argument("--phases", default="K0,K1,K2,K3,S0,S1,S2,S3,V0,V1,V2,V3,E0,E1,E2,E3")
    ap.add_argument("--dist", default="7,6,5,4,7,6,5,4")
    ap.add_argument("--distB", default="6,5,4,3,6,5,4,3")
    ap.add_argument("--wdistA", default="3,0,0,0,0,0,0,0,0,0,0,0,0,3,3,3")
    ap.add_argument("--wdistB", default="3,0,0,0,0,0,0,0,0,0,0,0,0,3,3,3")
    ap.add_argument("--qdistA", default="0,0,0,0,0,3,3,3,3,0,0,0,0,0,0,0")
    ap.add_argument("--qdistB", default="0,0,0,0,0,3,3,3,3,0,0,0,0,0,0,0")
    ap.add_argument("--placeA", default="O0:E0,O1:E1,O2:E2,T0:E3,T1:E3,T2:E3")
    ap.add_argument("--placeB", default="O0:E0,O1:E1,O2:E2,T0:E3,T1:E3,T2:E3")
    for k in ("nocompute", "nostore", "stamp", "noload", "trace", "htrace", "rtrace", "pkfma", "pkadd", "pkmul", "maxk", "kchain", "nomfma", "nosm", "nolds", "m16", "laste", "msum"):
        ap.add_argument("--" + k, action="store_true")
    ap.add_argument("--odd", default=None)
    a = ap.parse_args()
    if a.dbg: a.htrace = True
    DEPTH = a.depth
    if a.msum:
        assert a.m16 and DEPTH <= 5
        TR0, TR1 = 254, 255
    odd = None
    if a.odd is not None:
        odd = ap.parse_args(sys.argv[1:] + a.odd.split())
    open(a.o, "w").write(G(a).build(odd))
```

```python
import struct, math, sys, argparse

NAME = "standalone__mha_softmax__near_ridge"
HEAD_BYTES = 256 * 384
TENSOR_BYTES = 1024 * HEAD_BYTES
TILE = 64 * 384
NS = 6
NH = 4
DEPTH = 6
BARPOS = 20

def f32hex(x):
    return "0x%08x" % struct.unpack("<I", struct.pack("<f", x))[0]

HEADER = """; Kernarg layout for this problem (48 bytes, ptrs only, base s[0:1]):
"""

S0 = 0
QR = 128
XR = 180
FB = 212
TR0, TR1 = 236, 237
MX = 238
VD = 244
VA0 = 247
VB0 = 248
VC = 249
VQO = 253
INV = 254
SUMD = 236
NV = 256

SQ, SK, SV, SO = 12, 16, 20, 24
sC2 = 46
sW, sW3, sCUR, sNXT, sPROD, sCONS, sREM, sC, sNC, sT, sNXT2, sPRV, sPRV2, sPLIM = range(32, 46)

def otile(t):
    return 64 + 16 * t if t < 4 else XR + 16 * (t - 4)
def qslot(n):
    return QR + 4 * n
QLD = [[1 + 4 * cc + j for j in range(4)] for cc in range(3)]
QTMP = [0, 3, 7]
QFIN = [[QTMP[cc], QLD[cc][1], QLD[cc][0], QLD[cc][3]] for cc in range(3)]
def qfrag(s):
    return qslot(QFIN[s // 4][s % 4])
def qfrag16(s, u):
    return qslot(QFIN[s >> 1][2 * u + (s & 1)])

def cost(s):
    return 2 if s.startswith("v_exp") or s.startswith("v_rcp") else 1

class Path:
    def __init__(self):
        self.pro, self.body, self.waits, self.inpro = [], [], [], True

class G:
    def __init__(self, a):
        self.a = a
        fl = lambda s: "".join(" " + x for x in s.split(",") if x)
        self.ld, self.st, self.ldq = fl(a.ld), fl(a.st), fl(a.ldq if a.ldq is not None else a.ld)
        self.o = []
        self.nlab = 0
        self.common = []
        self.p = None
        self.grp, self.nvm, self.inlag = "", 0, False
    def e(self, s):
        self.o.append("    " + s)
    def lab(self, s):
        self.o.append(s + ":")
    def c(self, s):
        self.o.append("    ; " + s)
    def vm(self, s, tag, wov=None):
        win = self.a.winB if (self.a.winB and self.grp == "B") else self.a.win
        if wov is not None: win = wov
        if self.a.winalt:
            self.nvm += 1
            win += int(self.nvm * self.a.winalt) - int((self.nvm - 1) * self.a.winalt)
        if win and (not self.p.inpro or (self.a.winpro and self.grp == "B" and self.inlag)):
            self.e(f"s_waitcnt vmcnt({win - 1})")
        self.e(s)
        (self.p.pro if self.p.inpro else self.p.body).append(tag)
    def emit(self, x):
        if isinstance(x, tuple): self.vm(*x)
        else: self.e(x)
    def wait_for(self, tag):
        self.o.append(None)
        p = self.p
        p.waits.append((len(self.o) - 1, tag, p.inpro, len(p.pro) if p.inpro else len(p.body)))

    def trace(self, vreg, inc=False):
        if self.a.rtrace and inc:
            self.a.htrace = True; self.htrace(); self.a.htrace = False
        if not self.a.trace:
            return
        e = self.e
        e("s_memtime s[64:65]")
        e("s_mov_b32 m0, s66")
        e("s_waitcnt lgkmcnt(0)")
        e(f"v_writelane_b32 v{vreg}, s64, m0")
        if inc:
            e("s_add_u32 s66, s66, 1")

    def htrace(self):
        if not self.a.htrace:
            return
        e = self.e
        e("s_memrealtime s[64:65]")
        e("s_memtime s[68:69]")
        e("s_mov_b32 m0, s66")
        e("s_waitcnt lgkmcnt(0)")
        e(f"v_writelane_b32 v{TR0}, s64, m0")
        e(f"v_writelane_b32 v{TR1}, s68, m0")
        e("s_add_u32 s66, s66, 1")

    def dma_list(self, t, rel, hd, dh=0, adv=1):
        srd = SK if t < 4 else SV
        headreg = sNXT if rel else sCUR
        off = (t % 4) * TILE + dh * 12288
        assert off >= 0
        o = []
        if rel:
            o += [f"s_cmp_eq_u32 s{sREM}, 1", f"s_cselect_b32 s{srd+2}, 0, s{srd+2}"]
        o.append(f"s_mov_b32 m0, s{sPROD}" if not dh else f"s_{'add' if dh > 0 else 'sub'}_u32 m0, s{sPROD}, 12288")
        if off:
            o.append(f"s_add_u32 s{sT}, s{headreg}, {off}")
            so = sT
        else:
            o.append("s_nop 0")
            so = headreg
        for i in range(3):
            of = f" offset:{1024*i}" if i else ""
            o.append((f"buffer_load_dwordx4 v{VD+i}, s[{srd}:{srd+3}], s{so} offen{of}{self.ld} lds", ("T", t, hd)))
        if adv == 1:
            o += [f"s_add_u32 s{sPROD}, s{sPROD}, {TILE}",
                  f"s_cmp_eq_u32 s{sPROD}, s{sPLIM}",
                  f"s_cselect_b32 s{sPROD}, s{sW3}, s{sPROD}"]
        elif adv:
            o += [f"s_add_u32 s{sPROD}, s{sPROD}, {TILE * adv}",
                  f"s_cmp_ge_u32 s{sPROD}, s{sPLIM}",
                  f"s_cselect_b32 s{sT}, {NS * TILE}, 0",
                  f"s_sub_u32 s{sPROD}, s{sPROD}, s{sT}"]
        return o
    def qload(self, k, h0, h1, hd):
        cc, j = k // 4, k % 4
        r = qslot(QLD[cc][j])
        so = h1 if j >= 2 else h0
        off = (j & 1) * 3072 + 128 * cc
        o = f" offset:{off}" if off else ""
        return (f"buffer_load_dwordx4 v[{r}:{r+3}], v{VQO}, s[{SQ}:{SQ+3}], s{so} offen{o}{self.ldq}", ("Q", cc, hd))
    def oregs(self, cc):
        b = otile(2 * cc)
        return [b + 16, b + 4, b + 0, b + 12]
    def ostore(self, cc, j, hd):
        r = self.oregs(cc)[j]
        so = sPRV2 if j >= 2 else sPRV
        off = (j & 1) * 3072 + 128 * cc
        o = f" offset:{off}" if off else ""
        return (f"buffer_store_dwordx4 v[{r}:{r+3}], v{VQO}, s[{SO}:{SO+3}], s{so} offen{o}{self.st}", ("O", cc, hd))

    def transp(self, L, T, isq=False):
        out = []
        for (a, b, d) in ((L[0], L[1], T), (L[2], L[3], L[0])):
            for k in range(4):
                out.append(f"v_cndmask_b32_dpp v{d+k}, v{b+k}, v{a+k}, vcc row_ror:8 row_mask:0xf bank_mask:0xf")
            for k in range(4):
                out.append(f"v_mov_b32_dpp v{b+k}, v{a+k} row_ror:8 row_mask:0xf bank_mask:0x3")
        F = [T, L[1], L[0], L[3]]
        if self.a.m16:
            if not isq:
                for q in (F[0], F[1], F[2], F[3]):
                    out.append(f"v_permlane16_swap_b32 v{q}, v{q+2}")
                    out.append(f"v_permlane16_swap_b32 v{q+1}, v{q+3}")
            return out
        for (a, b) in ((F[0], F[2]), (F[1], F[3])):
            for k in range(4):
                out.append(f"v_permlane16_swap_b32 v{a+k}, v{b+k}")
        return out

    def adv_cons(self):
        e = self.e
        e(f"s_add_u32 s{sCONS}, s{sCONS}, {TILE}")
        e(f"s_cmp_eq_u32 s{sCONS}, {NS*TILE}")
        e(f"s_cselect_b32 s{sCONS}, 0, s{sCONS}")

    def prologue(self):
        e, a = self.e, self.a
        e("s_cmp_ge_u32 s2, 256")
        e("s_cbranch_scc1 L_end")
        if a.stamp or a.dbg:
            e("s_memrealtime s[50:51]")
            e("s_memtime s[52:53]")
            e(f"s_load_dwordx2 s[48:49], s[0:1], {32 if a.dbg else 40}")
            e("s_mov_b32 s66, 0")
        e("s_load_dwordx8 s[4:11], s[0:1], 0")
        e("v_and_b32 v1, 63, v0                 ; lane")
        e("v_lshrrev_b32 v2, 6, v0              ; wave")
        e("v_lshrrev_b32 v3, 3, v1              ; lane/8")
        e(f"v_readfirstlane_b32 s{sW}, v2")
        e("v_and_b32 v4, 7, v1                  ; lane%8")
        e("v_and_b32 v5, 1, v2")
        if not a.m16: e("v_lshlrev_b32 v5, 1, v5              ; (w&1)<<1")
        e("v_mul_u32_u24 v6, 3072, v2           ; w*3072")
        e("v_lshl_add_u32 v6, v3, 7, v6         ; + (lane/8)*128")
        for i in range(3):
            e(f"v_add_u32 v7, {8*i}, v3")
            e("v_mul_u32_u24 v7, 11, v7")
            e("v_lshrrev_b32 v7, 5, v7")
            if a.m16:
                e("v_and_or_b32 v8, v7, 6, v5           ; f(row)")
            else:
                e("v_bfe_u32 v8, v7, 1, 1")
                e("v_lshlrev_b32 v8, 2, v8")
                e("v_bfe_u32 v9, v7, 2, 1")
                e("v_or3_b32 v8, v8, v9, v5             ; f(row)")
            e("v_xor_b32 v8, v8, v4")
            e(f"v_lshl_add_u32 v{VD+i}, v8, 4, v6")
        e("v_lshrrev_b32 v8, 5, v1              ; h")
        e("v_lshl_add_u32 v11, v2, 5, v4")
        e("v_mul_u32_u24 v11, 384, v11")
        if a.m16:
            e("v_and_b32 v12, 1, v3")
            e("v_lshl_add_u32 v11, v12, 6, v11")
            e("v_bfe_u32 v12, v1, 4, 1")
            e("v_lshl_add_u32 v11, v12, 5, v11")
            e(f"v_lshl_add_u32 v{VQO}, v8, 4, v11   ; (32w + lane%8)*384 + 64*l3 + 32*l4 + 16*l5")
        else:
            e("v_and_b32 v12, 3, v3")
            e("v_lshl_add_u32 v11, v12, 5, v11")
            e(f"v_lshl_add_u32 v{VQO}, v8, 4, v11   ; (32w + lane%8)*384 + 32*((lane>>3)&3) + 16h")
        e(f"s_mul_i32 s{sW3}, s{sW}, 3072")
        e(f"s_mov_b32 s{sPROD}, s{sW3}")
        e(f"s_add_u32 s{sPLIM}, s{sW3}, {NS*TILE}")
        if a.xor:
            e(f"s_xor_b32 s2, s2, {a.xor}")
        e(f"s_mul_i32 s{sCUR}, s2, {HEAD_BYTES * a.hmul}")
        self.hstep = a.hstep * HEAD_BYTES
        e("s_waitcnt lgkmcnt(0)")
        for srd, p, n in ((SQ, 4, TENSOR_BYTES), (SK, 6, TENSOR_BYTES), (SV, 8, TENSOR_BYTES), (SO, 10, 0)):
            if a.noload and srd != SO:
                n = 0
            e(f"s_mov_b32 s{srd}, s{p}")
            e(f"s_and_b32 s{srd+1}, s{p+1}, 0xffff")
            e(f"s_mov_b32 s{srd+2}, {n}")
            e(f"s_mov_b32 s{srd+3}, 0x20000")

    def setup2(self):
        e = self.e
        if self.a.m16:
            e("v_and_b32 v7, 15, v1                 ; c")
            e("v_bfe_u32 v9, v7, 3, 1")
            e("v_and_or_b32 v9, v7, 6, v9           ; f(c)")
            e("v_bfe_u32 v10, v1, 4, 1")
            e("v_lshl_or_b32 v10, v10, 1, v8        ; 2*l4 + l5")
            e("v_xor_b32 v9, v9, v10")
            e("v_mul_u32_u24 v10, 384, v7")
            e(f"v_lshl_add_u32 v{VA0}, v9, 4, v10")
            e("v_lshrrev_b32 v7, 2, v1")
            e("v_and_or_b32 v9, v7, 6, v8           ; f(row)")
            e("v_bfe_u32 v10, v1, 1, 1")
            e("v_xor_b32 v9, v9, v10")
            e("v_mul_u32_u24 v10, 384, v7")
            e("v_lshl_add_u32 v10, v9, 4, v10")
            e("v_and_b32 v11, 1, v1")
            e(f"v_lshl_add_u32 v{VB0}, v11, 3, v10")
        else:
            self.setup32()
        self.setup3()

    def setup32(self):
        e = self.e
        e("v_and_b32 v7, 31, v1                 ; m")
        e("v_bfe_u32 v9, v7, 1, 1")
        e("v_lshlrev_b32 v9, 2, v9")
        e("v_bfe_u32 v10, v7, 2, 2")
        e("v_or_b32 v9, v9, v10                 ; f(m)")
        e("v_xor_b32 v9, v9, v8                 ; f(m)^h")
        e("v_mul_u32_u24 v10, 384, v7           ; m*384")
        e(f"v_lshl_add_u32 v{VA0}, v9, 4, v10")
        e("v_bfe_u32 v9, v1, 2, 2               ; r")
        e("v_lshl_add_u32 v10, v8, 2, v9        ; 4h+r")
        e("v_mul_u32_u24 v10, 384, v10")
        e("v_bfe_u32 v11, v1, 1, 1              ; cc>>1")
        e("v_lshl_add_u32 v10, v11, 3, v10      ; base")
        e("v_bfe_u32 v11, v1, 3, 1              ; r>>1")
        e("v_lshlrev_b32 v11, 2, v11")
        e("v_bfe_u32 v12, v1, 4, 1              ; up")
        e("v_lshlrev_b32 v12, 1, v12")
        e("v_and_b32 v13, 1, v1")
        e("v_xor_b32 v13, v13, v8               ; (cc&1)^h")
        e("v_or3_b32 v11, v11, v12, v13         ; x")
        e(f"v_lshl_add_u32 v{VB0}, v11, 4, v10")

    def setup3(self):
        e = self.e
        if self.a.msum:
            for k in range(4): e(f"v_mov_b32 v{FB + 4 * DEPTH + k}, 0x3f803f80")
        e(f"s_mov_b32 s{sCONS}, 0")
        e(f"s_mov_b32 s{sREM}, {NH}")
        c = 192 ** -0.5 * math.log2(math.e)
        e(f"s_mov_b32 s{sC}, {f32hex(c)}")
        e(f"s_mov_b32 s{sNC}, {f32hex(-c)}")
        if self.a.m16 and self.a.pkfma:
            e(f"s_mov_b32 s{sC2}, {f32hex(c)}")
            e(f"s_mov_b32 s{sC2+1}, {f32hex(c)}")
        e(f"s_add_u32 s{sNXT}, s{sCUR}, {self.hstep}")
        e(f"s_add_u32 s{sNXT2}, s{sNXT}, 6144")
        e(f"s_mov_b32 s{sPRV}, s{sCUR}")
        e(f"s_mov_b32 s{sPRV2}, s{sCUR}")
        e("s_mov_b32 vcc_lo, 0x00ff00ff")
        e("s_mov_b32 vcc_hi, 0x00ff00ff")

    def addr_calc(self, kind):
        base = VA0 if kind == "K" else VB0
        o = [f"v_add_u32 v{VC}, s{sCONS}, v{base}"]
        o += [f"v_xor_b32 v{VC+u}, {u<<5}, v{VC}" for u in range(1, 4)]
        o += [f"s_add_u32 s{sCONS}, s{sCONS}, {TILE}",
              f"s_cmp_eq_u32 s{sCONS}, {NS*TILE}",
              f"s_cselect_b32 s{sCONS}, 0, s{sCONS}"]
        return o
    def kord(self, jj):
        return (jj % 12, jj // 12) if self.a.kchain else (jj // 2, jj % 2)
    def vord(self, jj):
        if self.a.vchain == 4: return (jj % 4, jj // 4)
        if self.a.vchain == 2: return (2 * (jj // 12) + jj % 2, (jj % 12) // 2)
        return (jj // 6, jj % 6)
    def kord16(self, jj):
        return (jj // 6, jj % 6) if self.a.kchain else (jj % 4, jj // 4)
    def vord16(self, jj):
        return (jj % 2, jj // 2) if self.a.vchain else (jj // 12, jj % 12)
    def item_mfma16(self, kind, j):
        b = FB + 4 * (j % DEPTH)
        tl, jj = j // 24, j % 24
        o = []
        for u in range(2):
            if kind == "K":
                kt, s = self.kord16(jj)
                kt += 4 * tl
                D = S0 + 16 * (kt >> 1) + 8 * u + 4 * (kt & 1)
                first = s == 0
                B = qfrag16(s, u)
            else:
                T, dt = self.vord16(jj)
                D = otile(2 * (dt // 4)) + 16 * u + 4 * (dt % 4)
                first = tl == 0 and T == 0
                B = 8 * (2 * tl + T) + 4 * u
            C = "0" if first else f"v[{D}:{D+3}]"
            o.append(f"v_mfma_f32_16x16x32_bf16 v[{D}:{D+3}], v[{b}:{b+3}], v[{B}:{B+3}], {C}")
        if kind == "V" and self.a.msum and dt in (3, 8):
            u = int(dt == 8)
            D, B, one = SUMD + 4 * u, 8 * (2 * tl + T) + 4 * u, FB + 4 * DEPTH
            C = "0" if first else f"v[{D}:{D+3}]"
            o.append(f"v_mfma_f32_16x16x32_bf16 v[{D}:{D+3}], v[{one}:{one+3}], v[{B}:{B+3}], {C}")
        return o
    def item_reads(self, kind, j):
        r = self.item_reads0(kind, j)
        if self.a.dupread and j % self.a.dupread == 0:
            r = [x.replace(f"v[{FB + 4 * (j % DEPTH)}:", f"v[{TR0 - 2}:").replace(f":{FB + 4 * (j % DEPTH) + 3}]", f":{TR0 + 1}]") for x in r[:0]] + r
        return r
    def item_reads0(self, kind, j):
        b = FB + 4 * (j % DEPTH)
        jj = j % 24
        if self.a.m16:
            if kind == "K":
                kt, s = self.kord16(jj)
                return [f"ds_read_b128 v[{b}:{b+3}], v{VC+2*(s&1)} offset:{kt*6144+128*(s>>1)}"]
            T, dt = self.vord16(jj)
            off = T * 12288 + 128 * (dt // 4)
            return [f"ds_read_b64_tr_b16 v[{b}:{b+1}], v{VC+dt%4} offset:{off}",
                    f"ds_read_b64_tr_b16 v[{b+2}:{b+3}], v{VC+dt%4} offset:{off+6144}"]
        if kind == "K":
            s, st = self.kord(jj)
            return [f"ds_read_b128 v[{b}:{b+3}], v{VC+s%4} offset:{st*12288+128*(s//4)}"]
        ks, t = self.vord(jj)
        off = ks * 6144 + (t // 2) * 128
        return [f"ds_read_b64_tr_b16 v[{b}:{b+1}], v{VC+2*(t%2)} offset:{off}",
                f"ds_read_b64_tr_b16 v[{b+2}:{b+3}], v{VC+2*(t%2)+1} offset:{off+3072}"]
    def item_mfma(self, kind, j):
        b = FB + 4 * (j % DEPTH)
        tl, jj = j // 24, j % 24
        if kind == "K":
            s, st = self.kord(jj)
            D = S0 + 16 * (2 * tl + st)
            C = "0" if s == 0 else f"v[{D}:{D+15}]"
            q = qfrag(s)
            return f"v_mfma_f32_32x32x16_bf16 v[{D}:{D+15}], v[{b}:{b+3}], v[{q}:{q+3}], {C}"
        ks, t = self.vord(jj)
        D = otile(t)
        P = 8 * (2 * tl + ks // 2) + 4 * (ks % 2)
        C = "0" if (tl == 0 and ks == 0) else f"v[{D}:{D+15}]"
        return f"v_mfma_f32_32x32x16_bf16 v[{D}:{D+15}], v[{b}:{b+3}], v[{P}:{P+3}], {C}"

    def plain(self, x):
        if isinstance(x, tuple):
            if x[0] == "WAIT": self.wait_for(x[1])
            elif x[0] == "LABEL": self.lab(x[1])
            else: self.vm(*x)
        elif self.a.nocompute and x.startswith(("v_", "ds_")):
            pass
        elif self.a.nomfma and x.startswith("v_mfma"):
            self.e("s_nop 15"); self.e("s_nop 15")
        elif self.a.nosm and x.startswith(("v_exp", "v_fma", "v_add_f32", "v_max3")):
            pass
        elif self.a.nolds and x.startswith("ds_read") and not self.p.inpro:
            pass
        else:
            self.e(x)

    def preread(self, kind):
        for x in self.addr_calc(kind): self.plain(x)
        for j in range(DEPTH):
            for r in self.item_reads(kind, j): self.plain(r)

    def mblock(self, kind, sides, barrier):
        rpf = 1 if kind == "K" else 2
        pend = list(range(DEPTH))
        def req(j):
            for r in self.item_reads(kind, j): self.plain(r)
            pend.append(j)
        for j in range(96):
            tl, jj = j // 24, j % 24
            if j in pend:
                k = pend.index(j)
                if not self.a.nocompute:
                    self.e(f"s_waitcnt lgkmcnt({(len(pend) - k - 1) * rpf})")
                del pend[:k + 1]
            sd = sides.get(j, [])
            if self.a.m16:
                m = self.item_mfma16(kind, j)
                self.plain(m[0])
                h = len(sd) // 2
                if any(isinstance(x, str) and "s_cbranch" in x for x in sd): h = 0
                for x in sd[:h]: self.plain(x)
                sd = sd[h:]
                for x in m[1:]: self.plain(x)
            else:
                self.plain(self.item_mfma(kind, j))
            if jj + DEPTH < 24:
                req(j + DEPTH)
            elif jj == 24 - DEPTH and tl < 3:
                for x in self.addr_calc(kind): self.plain(x)
            if jj == BARPOS:
                barrier(tl)
                pend.clear()
                if tl < 3:
                    for k in range(BARPOS + DEPTH - 23): req(24 * (tl + 1) + k)
            elif jj > BARPOS and tl < 3:
                req(j + DEPTH)
            for x in sd:
                self.plain(x)

    def max_list(self, tiles, first):
        o = []
        vals = [16 * t + i for t in tiles for i in range(16)]
        if self.a.m16:
            v0 = [r for r in vals if not r & 8]; v1 = [r for r in vals if r & 8]
            vals = [x for i in range(0, len(v0), 2) for x in (v0[i], v0[i+1], v1[i], v1[i+1])]
        k = 0
        if first:
            o.append(f"v_max_f32 v{MX}, v{vals[0]}, v{vals[1]}")
            o.append(f"v_max_f32 v{MX+1}, v{vals[2]}, v{vals[3]}")
            k = 4
        ch = 0
        while k < len(vals):
            o.append(f"v_max3_f32 v{MX+ch}, v{MX+ch}, v{vals[k]}, v{vals[k+1]}")
            ch ^= 1
            k += 2
        return o

    def softmax16(self, maxdone):
        a = self.a
        o = []
        e = o.append
        M, NEG = MX, MX + 2
        SUM = [MX, MX + 4]
        o += self.max_list(list(range(maxdone, 8)), maxdone == 0)
        def allred(op, x, y, fin):
            e("s_nop 1")
            e(f"v_permlane32_swap_b32 v{x}, v{y}")
            e(f"{op} v{x}, v{x}, v{y}")
            e(f"v_mov_b32 v{y}, v{x}")
            e("s_nop 1")
            e(f"v_permlane16_swap_b32 v{x}, v{y}")
            e(f"{op} v{x}, v{x}, v{y}")
            d = fin(x)
            e(f"v_mov_b32 v{d+1}, v{d}")
            e("s_nop 1")
            e(f"v_permlane32_swap_b32 v{d}, v{d+1}")
        def negf(x):
            e(f"v_mul_f32 v{NEG}, s{sNC}, v{x}"); return NEG
        allred("v_max_f32", M, M + 1, negf)
        U = lambda i: (i >> 2) & 1
        def fma(i):
            u = U(i)
            if a.pkfma:
                e(f"v_pk_fma_f32 v[{2*i}:{2*i+1}], v[{2*i}:{2*i+1}], s[{sC2}:{sC2+1}], v[{NEG}:{NEG+1}] op_sel:[0,0,{u}] op_sel_hi:[1,1,{u}]")
            else:
                e(f"v_fma_f32 v{2*i}, v{2*i}, s{sC}, v{NEG+u}")
                e(f"v_fma_f32 v{2*i+1}, v{2*i+1}, s{sC}, v{NEG+u}")
        def ex(i):
            e(f"v_exp_f32 v{2*i}, v{2*i}")
            e(f"v_exp_f32 v{2*i+1}, v{2*i+1}")
        def fin(i):
            S = SUM[U(i)]
            if a.msum:
                pass
            elif i in (0, 4):
                e(f"v_mov_b32 v{S}, v{2*i}")
                e(f"v_mov_b32 v{S+1}, v{2*i+1}")
            elif a.pkadd:
                e(f"v_pk_add_f32 v[{S}:{S+1}], v[{S}:{S+1}], v[{2*i}:{2*i+1}]")
            else:
                e(f"v_add_f32 v{S}, v{S}, v{2*i}")
                e(f"v_add_f32 v{S+1}, v{S+1}, v{2*i+1}")
            e(f"v_cvt_pk_bf16_f32 v{i}, v{2*i}, v{2*i+1}")
        fma(0); fma(1); ex(0)
        for i in range(64):
            if i + 2 < 64: fma(i + 2)
            if i + 1 < 64: ex(i + 1)
            else: e("s_nop 0")
            fin(i)
        if a.msum:
            e("s_nop 1")
            return o
        e(f"v_add_f32 v{SUM[0]}, v{SUM[0]}, v{SUM[0]+1}")
        e(f"v_add_f32 v{SUM[0]+1}, v{SUM[1]}, v{SUM[1]+1}")
        def invf(x):
            e(f"v_rcp_f32 v{INV}, v{x}"); e("s_nop 0"); return INV
        allred("v_add_f32", SUM[0], SUM[0] + 1, invf)
        return o

    def softmax_list(self, maxdone):
        a = self.a
        if a.m16: return self.softmax16(maxdone)
        o = []
        e = o.append
        M, NEG, SUM = MX, MX + 2, MX + 4
        o += self.max_list(list(range(maxdone, 8)), maxdone == 0)
        e(f"v_max_f32 v{M}, v{M}, v{M+1}")
        e(f"v_mov_b32 v{M+1}, v{M}")
        e("s_nop 1")
        e(f"v_permlane32_swap_b32 v{M}, v{M+1}")
        e(f"v_max_f32 v{M}, v{M}, v{M+1}")
        e(f"v_mul_f32 v{NEG}, s{sNC}, v{M}")
        if a.pkfma:
            e(f"v_mov_b32 v{NEG+1}, s{sC}")
        def fma(i):
            if a.pkfma:
                e(f"v_pk_fma_f32 v[{2*i}:{2*i+1}], v[{2*i}:{2*i+1}], v[{NEG}:{NEG+1}], v[{NEG}:{NEG+1}] op_sel:[0,1,0] op_sel_hi:[1,1,0]")
            else:
                e(f"v_fma_f32 v{2*i}, v{2*i}, s{sC}, v{NEG}")
                e(f"v_fma_f32 v{2*i+1}, v{2*i+1}, s{sC}, v{NEG}")
        def ex(i):
            e(f"v_exp_f32 v{2*i}, v{2*i}")
            e(f"v_exp_f32 v{2*i+1}, v{2*i+1}")
        def fin(i):
            if i == 0:
                e(f"v_mov_b32 v{SUM}, v0")
                e(f"v_mov_b32 v{SUM+1}, v1")
            elif a.pkadd:
                e(f"v_pk_add_f32 v[{SUM}:{SUM+1}], v[{SUM}:{SUM+1}], v[{2*i}:{2*i+1}]")
            else:
                e(f"v_add_f32 v{SUM}, v{SUM}, v{2*i}")
                e(f"v_add_f32 v{SUM+1}, v{SUM+1}, v{2*i+1}")
            e(f"v_cvt_pk_bf16_f32 v{i}, v{2*i}, v{2*i+1}")
        fma(0); fma(1); ex(0)
        for i in range(64):
            if i + 2 < 64: fma(i + 2)
            if i + 1 < 64: ex(i + 1)
            else: e("s_nop 0")
            fin(i)
        e(f"v_add_f32 v{SUM}, v{SUM}, v{SUM+1}")
        e(f"v_mov_b32 v{SUM+1}, v{SUM}")
        e("s_nop 1")
        e(f"v_permlane32_swap_b32 v{SUM}, v{SUM+1}")
        e(f"v_add_f32 v{SUM}, v{SUM}, v{SUM+1}")
        e(f"v_rcp_f32 v{INV}, v{SUM}")
        return o

    def ochunk_list(self, cc):
        o = []
        b = otile(2 * cc)
        for i in range(4):
            if self.a.pkmul:
                for k in range(4):
                    r = b + 8 * i + 2 * k
                    u = (i >> 1) if self.a.m16 else 0
                    o.append(f"v_pk_mul_f32 v[{r}:{r+1}], v[{r}:{r+1}], v[{INV}:{INV+1}] op_sel:[0,{u}] op_sel_hi:[1,{u}]")
            else:
                for k in range(8):
                    o.append(f"v_mul_f32 v{b+8*i+k}, v{b+8*i+k}, v{SUMD + 4 * (i >> 1) if self.a.msum else INV + ((i >> 1) if self.a.m16 else 0)}")
            for k in range(4):
                o.append(f"v_cvt_pk_bf16_f32 v{b+4*i+k}, v{b+8*i+2*k}, v{b+8*i+2*k+1}")
        o += self.transp([b, b + 4, b + 8, b + 12], b + 16)
        return o
    def qt_list(self, cc):
        return self.transp([qslot(x) for x in QLD[cc]], qslot(QTMP[cc]), True)

    def vblock(self, lst, nparts, groups, barrier, nxt, tail):
        n = len(lst)
        cs = [0]
        for s in lst: cs.append(cs[-1] + (cost(s) if isinstance(s, str) else 0))
        lastpos = max(n - tail, 0)
        tot = cs[lastpos]
        cuts = []
        for p in range(1, nparts):
            cuts.append(min(i for i in range(n + 1) if cs[i] >= tot * p / nparts))
        cuts.append(lastpos)
        lo = 0
        ins = {}
        for p, hi in enumerate(cuts):
            g = groups[p]
            for k, grp in enumerate(g):
                ins.setdefault(lo + int(k * (hi - lo) * self.a.front) // len(g), []).extend(grp)
            lo = hi
        for i in range(n + 1):
            if i in cuts:
                for p, cpos in enumerate(cuts):
                    if cpos == i:
                        barrier(p)
                        if p == nparts - 1 and nxt: self.preread(nxt)
            for x in ins.get(i, []): self.plain(x)
            if i < n: self.plain(lst[i])

    def group(self, name, lag):
        e, a = self.e, self.a
        phases = self.phases
        n = len(phases)
        p = self.p
        self.grp, self.inlag = name, False
        def dma_groups(g, pro):
            out = []
            for (t, ha, dh, adv) in self.duty[name].get(g % n, []):
                if pro:
                    out.append(self.dma_list(t, 0, 0, dh, adv)); assert ha == 0
                else:
                    rel = ha + (1 if g >= n else 0)
                    assert rel in (0, 1), (name, g, t, ha)
                    d = self.dma_list(t, rel, rel, dh, adv)
                    if g > min(n, a.skipbar):
                        assert rel == 1
                        self.nlab += 1
                        d = [d[0], f"s_cbranch_scc1 L_nd{self.nlab}"] + d[2:] + [("LABEL", f"L_nd{self.nlab}")]
                    out.append(d)
            return out
        def end_interval(g, pro):
            self.trace(TR0)
            for (t, ha) in self.cert.get(g % n, []):
                self.wait_for(("T", t, ha if pro else ha + (1 if g >= n else 0)))
            if a.pace >= 0 and a.pacelo <= g <= a.pacehi:
                if pro:
                    e(f"s_waitcnt vmcnt({a.pace})")
                else:
                    self.nlab += 1
                    e(f"s_cmp_lg_u32 s{sREM}, {NH}")
                    e(f"s_cbranch_scc1 L_np{self.nlab}")
                    e(f"s_waitcnt vmcnt({a.pace})")
                    self.lab(f"L_np{self.nlab}")
            e("s_waitcnt lgkmcnt(0)")
            if not pro and g >= min(n, a.skipbar):
                self.nlab += 1
                e(f"s_cmp_eq_u32 s{sREM}, 1")
                e(f"s_cbranch_scc1 L_nb{self.nlab}")
                e("s_barrier")
                self.lab(f"L_nb{self.nlab}")
            else:
                e("s_barrier")
            self.trace(TR1, True)
        pt = self.pro_tiles[name]
        qa = a.qatA if name == "A" else a.qatB
        order = pt[:qa] + ["Q"] + pt[qa:]
        es = [x.split(",") if x else [] for x in a.es.split(";")] if a.es else None
        if es:
            order = [0, "Q"] if name == "A" else [0]
        for step in order:
            if step == "Q":
                e(f"s_add_u32 s{sT}, s{sCUR}, 6144")
                for k in range(12):
                    self.vm(*self.qload(k, sCUR, sT, 0))
            else:
                for x in self.dma_list(step, 0, 0): self.emit(x)
        if a.own:
            assert es
            first = min([t for t in range(4, 8) if a.own[t] == name] + [8 + t for t in range(4) if a.own[t] == name])
            if name == "A": e(f"s_add_u32 s{sPROD}, s{sW3}, {TILE * (first % NS)}")
        elif es and name == "A":
            e(f"s_add_u32 s{sPROD}, s{sPROD}, {TILE * (len(pt) - 1)}")
        self.setup2()
        if es and name == "B":
            e(f"s_add_u32 s{sPRV2}, s{sCUR}, 6144")
        self.wait_for(("T", 0, 0))
        e("s_barrier")
        qn, tdone = 0, []
        pf = [int(x) for x in a.pf.split(",")] if (a.pf and lag) else []
        if pf:
            e("v_lshlrev_b32 v14, 4, v1")
        done = 0
        self.inlag = True
        for g in range(lag):
            for tok in (es[g] if es else []):
                if tok[0] == "K":
                    t = int(tok[1])
                    if t in self.pro_tiles["A"] or a.own:
                        e(f"s_sub_u32 m0, s{sPROD}, 12288")
                        e(f"s_add_u32 s{sT}, s{sCUR}, {t * TILE - 12288}")
                        for i in range(3):
                            of = f" offset:{1024*i}" if i else ""
                            self.vm(f"buffer_load_dwordx4 v{VD+i}, s[{SK}:{SK+3}], s{sT} offen{of}{self.ld} lds", ("T", t, 0))
                    for x in self.dma_list(t, 0, 0): self.emit(x)
                    if a.own and t == 3: e(f"s_add_u32 s{sPROD}, s{sW3}, {TILE * (first % NS)}")
                elif tok[0] == "Q":
                    for k in range(int(tok[1:])):
                        self.vm(*self.qload(qn, sCUR, sPRV2, 0)); qn += 1
            for grp, (t, _, _, _) in zip(dma_groups(g, True), self.duty[name].get(g % n, [])):
                if es and t <= 3: continue
                for x in grp: self.emit(x)
            for tok in (es[g] if es else []):
                if tok[0] == "T":
                    cc = int(tok[1]); tdone.append(cc)
                    self.wait_for(("Q", cc, 0))
                    for x in self.qt_list(cc): self.plain(x)
            if pf and pf[g]:
                srd = {"Q": SQ, "K": SK, "V": SV}[a.pfsrc]
                e(f"s_sub_u32 s{sT}, s{sW}, 4")
                e(f"s_mul_i32 s{sT}, s{sT}, {1024 * pf[g]}")
                e(f"s_add_u32 s{sT}, s{sT}, s{sNXT}")
                if done: e(f"s_add_u32 s{sT}, s{sT}, {done}")
                fl = "".join(" " + x for x in a.pfld.split(",") if x)
                for k in range(pf[g]):
                    if k == 4: e(f"s_add_u32 s{sT}, s{sT}, 4096")
                    of = f" offset:{1024 * (k % 4)}" if k % 4 else ""
                    self.vm(f"buffer_load_dwordx4 v[{XR}:{XR+3}], v14, s[{srd}:{srd+3}], s{sT} offen{of}{fl}", ("P", g, 0))
                done += 4 * 1024 * pf[g]
                assert done <= HEAD_BYTES and pf[g] <= 8
            end_interval(g, True)
        assert not (es and lag) or qn == 12
        self.preread("K")
        for cc in range(3):
            if cc in tdone: continue
            self.wait_for(("Q", cc, 0))
            for s in self.qt_list(cc): self.plain(s)
        p.inpro = False
        self.o.append(".p2align 6")
        self.lab(f"L_head{name}{self.sfx}")
        self.htrace()
        place = dict(x.split(":") for x in (a.placeA if name == "A" else a.placeB).split(","))
        qdist = dict(zip(phases, [int(x) for x in (a.qdistA if name == "A" else a.qdistB).split(",")]))
        assert sum(qdist.values()) == 12
        qk = [4 * cc + j for j in range(4) for cc in range(3)] if a.qord == "j" else list(range(12))
        ql = [self.qload(k, sNXT, sNXT2, 1) for k in qk]
        qpre = [f"s_cmp_eq_u32 s{sREM}, 1", f"s_cselect_b32 s{SQ+2}, 0, s{SQ+2}"]
        units = {}
        for cc in range(3):
            units[f"O{cc}"] = self.ochunk_list(cc)
            units[f"T{cc}"] = [("WAIT", ("Q", cc, 1))] + self.qt_list(cc)
        wdist = dict(zip(phases, [int(x) for x in (a.wdistA if name == "A" else a.wdistB).split(",")]))
        assert sum(wdist.values()) == 12
        idx = {ph: i for i, ph in enumerate(phases)}
        e0 = idx["E0"]
        cyc = lambda ph: (idx[ph] - e0) % n
        wl = [(cc, j) for cc in range(3) for j in range(4)]
        if a.word == "j": wl = [(cc, j) for j in range(4) for cc in range(3)]
        wat = {}
        for ph in sorted(phases, key=cyc):
            wat[ph] = [wl.pop(0) for _ in range(wdist[ph])]
            for (cc, j) in wat[ph]:
                assert cyc(ph) > cyc(place[f"O{cc}"]), ("store before its chunk", ph, cc)
                lastok = ("K1", "K2", [x for x in phases if x[0] == "S"][-1])[cc]
                assert cyc(ph) <= cyc(lastok), ("store too late", ph, cc)
        mem, val = {}, {}
        for pi, ph in enumerate(phases):
            g = dma_groups(pi + lag, False)
            for k in range(qdist[ph]):
                g.append((qpre if len(ql) == 12 else []) + [ql.pop(0)])
            g += [[self.ostore(cc, j, -1 if ph[0] != "E" else 0)] for (cc, j) in wat[ph]]
            if a.wing:
                wv = [int(x) for x in a.wing.split(",")][(pi + lag) % n]
                g = [[x + (wv,) if isinstance(x, tuple) and x[0] not in ("WAIT", "LABEL") else x for x in grp] for grp in g]
            mem[ph] = g
            v = []
            for u in ("O0", "O1", "O2", "T0", "T1", "T2"):
                if place[u] == ph: v += units[u]
            val[ph] = v
        def msides(kind):
            sides = {}
            for tl in range(4):
                ph = f"{kind}{tl}"
                lo, hi = (24 * tl - 2 if tl else 0), 24 * tl + BARPOS - 1
                v = list(val[ph])
                if kind == "K" and a.maxk and tl >= 1:
                    v = v + self.max_list([2 * tl - 2, 2 * tl - 1], tl == 1)
                vlo = 24 * tl + 5 if (kind == "K" and a.maxk and tl >= 1 and not val[ph]) else lo
                for k, s in enumerate(v):
                    sides.setdefault(vlo + (k * (hi - vlo + 1)) // len(v), []).append(s)
                g = mem[ph]
                for k, grp in enumerate(g):
                    sides.setdefault(lo + int(k * (hi - lo + 1) * a.front) // len(g), []).extend(grp)
            return sides
        nsm = sum(1 for x in phases if x[0] == "S")
        nem = sum(1 for x in phases if x[0] == "E")
        self.c(f"---- {name}: K block")
        if a.prio: e(f"s_setprio {a.prio}")
        self.mblock("K", msides("K"), lambda t: end_interval(idx[f"K{t}"] + lag, False))
        self.c(f"---- {name}: softmax")
        if a.prio: e("s_setprio 0")
        e("s_nop 7")
        e("s_nop 2")
        self.vblock(self.softmax_list(6 if a.maxk else 0), nsm, [mem[f"S{i}"] for i in range(nsm)],
                    lambda i: end_interval(idx[f"S{i}"] + lag, False), "V", a.tail)
        self.c(f"---- {name}: V block")
        self.htrace()
        if a.prio: e(f"s_setprio {a.prio}")
        self.mblock("V", msides("V"), lambda t: end_interval(idx[f"V{t}"] + lag, False))
        self.c(f"---- {name}: E")
        if a.prio: e("s_setprio 0")
        e(f"s_mov_b32 s{sPRV}, s{sCUR}")
        e(f"s_add_u32 s{sPRV2}, s{sCUR}, 6144")
        e(f"s_mov_b32 s{SO+2}, {0 if a.nostore else TENSOR_BYTES}")
        e("s_nop 3")
        if a.msum:
            e("s_nop 3")
            for u in range(2): self.plain(f"v_rcp_f32 v{SUMD+4*u}, v{SUMD+4*u}")
        if a.laste:
            assert a.skipbar <= idx["E0"] + lag
            e(f"s_cmp_eq_u32 s{sREM}, 1")
            e(f"s_cbranch_scc1 L_last{name}{self.sfx}")
        for i in range(nem):
            last = i == nem - 1
            self.vblock(val[f"E{i}"], 1, [mem[f"E{i}"]], lambda _: end_interval(idx[f"E{i}"] + lag, False),
                        "K" if last else None, a.tail if last else 0)
        e(f"s_mov_b32 s{sCUR}, s{sNXT}")
        e(f"s_add_u32 s{sNXT}, s{sNXT}, {self.hstep}")
        e(f"s_add_u32 s{sNXT2}, s{sNXT}, 6144")
        e(f"s_sub_u32 s{sREM}, s{sREM}, 1")
        if a.laste:
            e(f"s_branch L_head{name}{self.sfx}")
            self.lab(f"L_last{name}{self.sfx}")
            self.c("---- last head: every chunk leaves as soon as it is ready")
            for cc in range(3):
                u = units[f"O{cc}"]
                st = [self.ostore(cc - 1, j, 0)[0] for j in range(4)] if cc else []
                for k, x in enumerate(u):
                    self.plain(x)
                    if st and k % 4 == 1: e(st.pop(0))
            e("s_nop 1")
            for j in range(4): e(self.ostore(2, j, 0)[0])
            return
        e(f"s_cmp_lg_u32 s{sREM}, 0")
        e(f"s_cbranch_scc1 L_head{name}{self.sfx}")
        self.c("---- last head: what the next head's K block would have done")
        done = [x for ph in phases if ph[0] == "E" for x in wat[ph]]
        for cc in range(3):
            if place[f"O{cc}"][0] != "E":
                for x in units[f"O{cc}"]: self.plain(x)
            for j in range(4):
                if (cc, j) not in done: e(self.ostore(cc, j, 0)[0])

    def check_schedule(self, name):
        n, lag = len(self.phases), self.a.lag
        rd = {int(ph[1]) + (4 if ph[0] == "V" else 0): i for i, ph in enumerate(self.phases) if ph[0] in "KV"}
        iss, cer = {}, {}
        for h in range(-1, 4):
            for g in range(n):
                for (t, ha) in self.issue[name].get(g, []): iss[8 * (h + ha) + t] = n * h + g
                for (t, ha) in self.cert.get(g, []): cer[8 * (h + ha) + t] = n * h + g
        order = sorted(iss, key=lambda x: (iss[x], x))
        assert order == sorted(order), "issue order must be stream order"
        for x in range(8, 24):
            h, t = divmod(x, 8)
            ra = n * h + rd[t]
            assert cer[x] < ra, ("cert", x)
            assert iss[x] <= cer[x], ("iss/cert", x)
            ho, to = divmod(x - NS, 8)
            assert iss[x] > n * ho + rd[to] + lag, ("slot", x, iss[x], n * ho + rd[to] + lag)
        self.pro_tiles[name] = [t for t in range(8) if iss[t] < 0]
        assert self.pro_tiles[name] == list(range(len(self.pro_tiles[name])))
        for t in range(1, 8):
            assert cer[t] >= 0, ("first-head cert", t)

    def schedule(self):
        a = self.a
        self.phases = a.phases.split(",")
        n = len(self.phases)
        rd = {int(ph[1]) + (4 if ph[0] == "V" else 0): i for i, ph in enumerate(self.phases) if ph[0] in "KV"}
        self.issue, self.cert, self.pro_tiles = {"A": {}, "B": {}}, {}, {}
        for name, dd in (("A", a.dist), ("B", a.distB or a.dist)):
            dist = [int(x) for x in dd.split(",")]
            for t in range(8):
                g = rd[t] - dist[t]
                self.issue[name].setdefault(g % n, []).append((t, 1 if g < 0 else 0))
            for g in self.issue[name]: self.issue[name][g].sort(key=lambda x: (x[1], x[0]))
        for t in range(8):
            g = rd[t] - 1
            self.cert.setdefault(g % n, []).append((t, 1 if g < 0 else 0))
        for name in "AB": self.check_schedule(name)
        self.duty = {"A": {}, "B": {}}
        when = {}
        for half in "AB":
            for g, l in self.issue[half].items():
                for (t, ha) in l: when[(t, half)] = g - n * ha
        for half in "AB":
            for g, l in self.issue[half].items():
                for (t, ha) in l:
                    if not a.own:
                        self.duty[half].setdefault(g, []).append((t, ha, 0, 1)); continue
                    who = a.own[t]
                    other = "B" if half == "A" else "A"
                    last = (when[(t, half)], half) > (when[(t, other)], other)
                    nxt = min(k for k in range(1, 9) if a.own[(t + k) % 8] == who)
                    dh = 0 if half == who else (1 if half == "B" else -1)
                    self.duty[who].setdefault(g, []).append((t, ha, dh, nxt if last else 0))
        for who in "AB":
            for g in self.duty[who]: self.duty[who][g].sort(key=lambda x: (x[1], x[0], x[3]))

    def build(self, odd=None):
        e, a = self.e, self.a
        lds = NS * TILE
        self.o.append(HEADER + f"; @launch grid=(256,1,1) block=(512,1,1) lds={lds}")
        self.o.append('.amdgcn_target "amdgcn-amd-amdhsa--gfx950"')
        self.o.append(".text")
        self.o.append(f".globl {NAME}_kernel")
        self.o.append(".p2align 8")
        self.o.append(f".type {NAME}_kernel,@function")
        self.lab(f"{NAME}_kernel")
        self.p = Path()
        self.prologue()
        common = list(self.p.pro)
        paths = []
        variants = [("", a)] + ([("o", odd)] if odd else [])
        if odd:
            e(f"s_getreg_b32 s{sT}, hwreg(HW_REG_XCC_ID)")
            e(f"s_bitcmp1_b32 s{sT}, 0")
            e("s_cbranch_scc1 L_varo")
        for sfx, va in variants:
            self.a = va
            self.schedule()
            if sfx: self.lab("L_var" + sfx)
            e(f"s_cmp_ge_u32 s{sW}, 4")
            e(f"s_cbranch_scc1 L_grpB{sfx}")
            for name, lag in (("A", 0), ("B", va.lag)):
                if name == "B": self.lab("L_grpB" + sfx)
                self.p = Path(); self.p.pro = list(common)
                self.sfx = sfx
                self.group(name, lag)
                paths.append(self.p)
                if not (name == "B" and va is variants[-1][1]): e("s_branch L_fin")
        self.a = a
        self.lab("L_fin")
        if a.dbg:
            e("s_waitcnt vmcnt(0)")
            self.htrace()
            e(f"s_cmp_lg_u32 s{sW}, {a.dbg - 1}")
            e("s_cbranch_scc1 L_end")
            e("s_mov_b32 s60, s48")
            e("s_and_b32 s61, s49, 0xffff")
            e("s_mov_b32 s62, 256")
            e("s_mov_b32 s63, 0x20000")
            e("v_mbcnt_lo_u32_b32 v8, -1, 0")
            e("v_lshlrev_b32 v8, 2, v8")
            e(f"v_subrev_u32 v0, s50, v{TR0}")
            e("s_sub_u32 s68, s68, s52")
            e("s_lshr_b32 s68, s68, 4")
            e("v_writelane_b32 v0, s68, 9")
            e("s_not_b32 s50, s50")
            e("v_mov_b32 v1, s64")
            e("v_writelane_b32 v1, s50, 0")
            e("s_mov_b64 exec, 0x3ff")
            e("buffer_atomic_add v0, v8, s[60:63], 0 offen offset:8")
            e("s_mov_b64 exec, 3")
            e("buffer_atomic_umax v1, v8, s[60:63], 0 offen")
        if a.stamp:
            e("s_waitcnt vmcnt(0)")
            e("s_memrealtime s[54:55]")
            e("s_memtime s[56:57]")
            e("s_getreg_b32 s58, hwreg(HW_REG_XCC_ID)")
            e("s_getreg_b32 s67, hwreg(HW_REG_HW_ID)")
            e("s_waitcnt lgkmcnt(0)")
            e(f"s_lshl_b32 s59, s2, 3")
            e(f"s_add_u32 s59, s59, s{sW}")
            e(f"s_lshl_b32 s59, s59, 5")
            e("s_mov_b32 s60, s48")
            e("s_and_b32 s61, s49, 0xffff")
            e("s_mov_b32 s62, 65536")
            e("s_mov_b32 s63, 0x20000")
            for k, r in enumerate((50, 51, 54, 55, 52, 56, 58, 67)):
                e(f"v_mov_b32 v{k}, s{r}")
            e("v_mov_b32 v8, 0")
            e("s_mov_b64 exec, 1")
            e("buffer_store_dwordx4 v[0:3], v8, s[60:63], s59 offen")
            e("buffer_store_dwordx4 v[4:7], v8, s[60:63], s59 offen offset:16")
            if a.trace or a.htrace or a.rtrace:
                e("s_mov_b64 exec, -1")
                e("s_mov_b32 s62, 0x1000000")
                e("v_mbcnt_lo_u32_b32 v8, -1, 0")
                e("v_mbcnt_hi_u32_b32 v8, -1, v8")
                e("v_lshlrev_b32 v8, 2, v8")
                e("s_lshl_b32 s59, s59, 4")
                e("s_add_u32 s59, s59, 65536")
                e(f"buffer_store_dword v{TR0}, v8, s[60:63], s59 offen")
                e(f"buffer_store_dword v{TR1}, v8, s[60:63], s59 offen offset:256")
        e("s_waitcnt vmcnt(0)")
        self.lab("L_end")
        e("s_endpgm")
        for p in paths: self.resolve_waits(p)
        self.o.append(f""".section .rodata,"a"
.p2align 6
.amdhsa_kernel {NAME}_kernel
  .amdhsa_next_free_vgpr {NV}
  .amdhsa_next_free_sgpr 72
  .amdhsa_accum_offset {NV}
  .amdhsa_group_segment_fixed_size 0
  .amdhsa_kernarg_size 48
  .amdhsa_user_sgpr_count 2
  .amdhsa_user_sgpr_kernarg_segment_ptr 1
  .amdhsa_system_sgpr_workgroup_id_x 1
.end_amdhsa_kernel
""")
        return "\n".join(self.o)

    def resolve_waits(self, p):
        for (idx, tag, inpro, pos) in p.waits:
            c = []
            if inpro:
                seq = p.pro[:pos]
                last = max(i for i, t in enumerate(seq) if t == tag)
                c.append(len(seq) - 1 - last)
            else:
                for it in range(NH):
                    seq = list(p.pro)
                    for j in range(it + 1):
                        b = p.body if j < it else p.body[:pos]
                        seq += [(k, x, h + j) for (k, x, h) in b]
                    want = (tag[0], tag[1], tag[2] + it)
                    if (it == 0 or self.a.own) and want not in seq: continue
                    last = max(i for i, t in enumerate(seq) if t == want)
                    c.append(len(seq) - 1 - last)
            if not c:
                self.o[idx] = f"    ; {tag}: the other group's"
                continue
            nn = min(c)
            assert nn <= 63
            self.o[idx] = f"    s_waitcnt vmcnt({nn})"

if __name__ == "__main__":
    ap = argparse.ArgumentParser()
    ap.add_argument("-o", default=f"cdna_kernels/{NAME}.s")
    ap.add_argument("--ld", default="nt")
    ap.add_argument("--ldq", default=None)
    ap.add_argument("--st", default="")
    ap.add_argument("--win", type=int, default=0)
    ap.add_argument("--skipbar", type=int, default=99)
    ap.add_argument("--own", default="")
    ap.add_argument("--wing", default="")
    ap.add_argument("--winB", type=int, default=0)
    ap.add_argument("--winalt", type=float, default=0)
    ap.add_argument("--winpro", type=int, default=0)
    ap.add_argument("--depth", type=int, default=6)
    ap.add_argument("--qord", default="c")
    ap.add_argument("--word", default="c")
    ap.add_argument("--dbg", type=int, default=0)
    ap.add_argument("--pace", type=int, default=-1)
    ap.add_argument("--pacelo", type=int, default=0)
    ap.add_argument("--pacehi", type=int, default=15)
    ap.add_argument("--front", type=float, default=1.0)
    ap.add_argument("--es", default="")
    ap.add_argument("--qatA", type=int, default=1)
    ap.add_argument("--qatB", type=int, default=9)
    ap.add_argument("--pf", default="")
    ap.add_argument("--pfsrc", default="Q")
    ap.add_argument("--pfld", default="")
    ap.add_argument("--vchain", type=int, default=0)
    ap.add_argument("--dupread", type=int, default=0)
    ap.add_argument("--xor", type=int, default=0)
    ap.add_argument("--hmul", type=int, default=1)
    ap.add_argument("--hstep", type=int, default=256)
    ap.add_argument("--lag", type=int, default=4)
    ap.add_argument("--prio", type=int, default=0)
    ap.add_argument("--tail", type=int, default=24)
    ap.add_argument("--phases", default="K0,K1,K2,K3,S0,S1,S2,S3,V0,V1,V2,V3,E0,E1,E2,E3")
    ap.add_argument("--dist", default="7,6,5,4,7,6,5,4")
    ap.add_argument("--distB", default="6,5,4,3,6,5,4,3")
    ap.add_argument("--wdistA", default="3,0,0,0,0,0,0,0,0,0,0,0,0,3,3,3")
    ap.add_argument("--wdistB", default="3,0,0,0,0,0,0,0,0,0,0,0,0,3,3,3")
    ap.add_argument("--qdistA", default="0,0,0,0,0,3,3,3,3,0,0,0,0,0,0,0")
    ap.add_argument("--qdistB", default="0,0,0,0,0,3,3,3,3,0,0,0,0,0,0,0")
    ap.add_argument("--placeA", default="O0:E0,O1:E1,O2:E2,T0:E3,T1:E3,T2:E3")
    ap.add_argument("--placeB", default="O0:E0,O1:E1,O2:E2,T0:E3,T1:E3,T2:E3")
    for k in ("nocompute", "nostore", "stamp", "noload", "trace", "htrace", "rtrace", "pkfma", "pkadd", "pkmul", "maxk", "kchain", "nomfma", "nosm", "nolds", "m16", "laste", "msum"):
        ap.add_argument("--" + k, action="store_true")
    ap.add_argument("--odd", default=None)
    a = ap.parse_args()
    if a.dbg: a.htrace = True
    DEPTH = a.depth
    if a.msum:
        assert a.m16 and DEPTH <= 5
        TR0, TR1 = 254, 255
    odd = None
    if a.odd is not None:
        odd = ap.parse_args(sys.argv[1:] + a.odd.split())
    open(a.o, "w").write(G(a).build(odd))
```
